```python
import torch

def _softmax(x, axis=-1):
    return torch.softmax(x, dim=axis)
def _gelu(x):
    return torch.nn.functional.gelu(x, approximate="tanh")
def _silu(x):
    return torch.nn.functional.silu(x)
def _sigmoid(x):
    return torch.sigmoid(x)
def _layernorm(x, axis=-1, eps=1e-5):
    m = x.mean(dim=axis, keepdim=True)
    v = x.var(dim=axis, keepdim=True, unbiased=False)
    return (x - m) / torch.sqrt(v + eps)
def _scatter_add(tgt, idx, src, axis=0):
    return tgt.clone().index_add_(axis, idx, src)
def _segment_sum(src, seg, n):
    out = torch.zeros((n,) + src.shape[1:], dtype=src.dtype)
    return out.index_add_(0, seg, src)
def _pad(x, pw):
    flat = tuple(v for pair in reversed(pw) for v in pair)
    return torch.nn.functional.pad(x, flat)

kernel_name = 'gated_mix__compressed_kv_cla__geglu_ffn__prompt'

def setup_inputs():

    _w = (lambda a: (lambda t: t.to(torch.bfloat16) if t.is_floating_point() else t)(torch.as_tensor(a)))
    def _A_setup():
        B, H, Sq, Sk, D, M = 1, 16, 2048, 2048, 256, 448
        Dc = 4 * D
        return {
            "x": _w((lambda *s: torch.randn(*s, dtype=torch.bfloat16) * 0.05)(B, Sq, M)),
            "c_kv": _w((lambda *s: torch.randn(*s, dtype=torch.bfloat16) * 0.8)(B, Sk, Dc)),
            "w_q": _w((lambda *s: torch.randn(*s, dtype=torch.bfloat16) * 6.4)(M, H, D) * (M ** -0.5)),
            "w_uk": _w((lambda *s: torch.randn(*s, dtype=torch.bfloat16) * 6.4)(Dc, H, D) * (Dc ** -0.5)),
            "w_uv": _w((lambda *s: torch.randn(*s, dtype=torch.bfloat16) * 0.8)(Dc, H, D) * (Dc ** -0.5)),
            "w_o": _w((lambda *s: torch.randn(*s, dtype=torch.bfloat16) * 0.8)(H, D, M) * ((H * D) ** -0.5)),
        }
    _A_in = _A_setup()

    def _B_setup():
        B, S, D, F = 1, 2048, 448, 1792
        return {
            "x": _w((lambda *s: torch.randn(*s, dtype=torch.bfloat16) * 0.05)(B, S, D)),
            "w_gate": _w((lambda *s: torch.randn(*s, dtype=torch.bfloat16) * 0.2)(D, F)),
            "w_up": _w((lambda *s: torch.randn(*s, dtype=torch.bfloat16) * 0.2)(D, F)),
            "w_down": _w((lambda *s: torch.randn(*s, dtype=torch.bfloat16) * 0.2)(F, D)),
        }
    _B_in = _B_setup()

    return {
        "A_x": _A_in["x"],
        "A_c_kv": _A_in["c_kv"],
        "A_w_q": _A_in["w_q"],
        "A_w_uk": _A_in["w_uk"],
        "A_w_uv": _A_in["w_uv"],
        "A_w_o": _A_in["w_o"],
        "B_x": _B_in["x"],
        "B_w_gate": _B_in["w_gate"],
        "B_w_up": _B_in["w_up"],
        "B_w_down": _B_in["w_down"],
        "gate_w": _w((lambda *s: torch.randn(*s, dtype=torch.bfloat16) * 0.05)(448) * 16.0),
    }

def reference(A_x, A_c_kv, A_w_q, A_w_uk, A_w_uv, A_w_o, B_x, B_w_gate, B_w_up, B_w_down, gate_w):
    def _A_ref(x, c_kv, w_q, w_uk, w_uv, w_o):
        B, Sq, M = x.shape[0], x.shape[1], x.shape[2]
        Sk = c_kv.shape[1]
        H, D = w_q.shape[1], w_q.shape[2]
        q = torch.einsum("bqm,mhd->bhqd", x, w_q)
        k = torch.einsum("bkc,chd->bhkd", c_kv, w_uk)
        v = torch.einsum("bkc,chd->bhkd", c_kv, w_uv)
        scores = torch.einsum("bhqd,bhkd->bhqk", q, k) * (D ** -0.5)
        off = Sk - Sq
        qi = torch.arange(Sq)[:, None]
        kj = torch.arange(Sk)[None, :]
        cmask = kj <= (qi + off)
        scores = torch.where(cmask[None, None], scores, -1e9)
        p = _softmax(scores, axis=-1)
        ctx = torch.einsum("bhqk,bhkd->bhqd", p, v)
        return torch.einsum("bhqd,hdm->bqm", ctx, w_o)

    def _B_ref(x, w_gate, w_up, w_down):
        return (_gelu(x @ w_gate) * (x @ w_up)) @ w_down

    x = A_x
    g = _sigmoid((x * gate_w).sum(-1, keepdims=True))
    a = _A_ref(x, A_c_kv, A_w_q, A_w_uk, A_w_uv, A_w_o)
    b = _B_ref(x, B_w_gate, B_w_up, B_w_down)
    return g * a + (1 - g) * b
```

```python
class Asm:
    def __init__(self):
        self.L = []
    def __call__(self, s):
        for ln in s.split("\n"):
            ln = ln.strip()
            if ln:
                self.L.append("    " + ln)
    def label(self, n):
        self.L.append(n + ":")
    def raw(self, s):
        self.L.append(s)
    def text(self):
        return "\n".join(self.L) + "\n"

def vr(b, n=1):
    return f"v{b}" if n == 1 else f"v[{b}:{b+n-1}]"
def ar(b, n=1):
    return f"a{b}" if n == 1 else f"a[{b}:{b+n-1}]"
def sr(b, n=1):
    return f"s{b}" if n == 1 else f"s[{b}:{b+n-1}]"

def interleave(mfmas, fillers):
    out = []
    out += fillers.get(-1, [])
    for i, m in enumerate(mfmas):
        out.append(m)
        out += fillers.get(i, [])
    return out

def kernel_header(name):
    return f".globl {name}\n.p2align 8\n.type {name},@function\n{name}:"

def kernel_desc(name, vgpr, sgpr, accum):
    return f""".amdhsa_kernel {name}
  .amdhsa_next_free_vgpr {vgpr}
  .amdhsa_next_free_sgpr {sgpr}
  .amdhsa_accum_offset {accum}
  .amdhsa_group_segment_fixed_size 0
  .amdhsa_kernarg_size 112
  .amdhsa_user_sgpr_count 2
  .amdhsa_user_sgpr_kernarg_segment_ptr 1
  .amdhsa_system_sgpr_workgroup_id_x 1
.end_amdhsa_kernel"""

A_X, A_CKV, A_WQ, A_WUK, A_WUV, A_WO, A_BX, A_WG, A_WU, A_WD, A_GW, A_OUT, A_DBG, A_WS = [8*i for i in range(14)]

MB = 1 << 20
WS_Q   = 0
WS_K   = 16 * MB
WS_V   = 32 * MB
WS_ACT = 48 * MB
WS_G   = 72 * MB
WS_PO  = 80 * MB
WS_PS  = 90 * MB
WS_P3  = 96 * MB
WS_PROF = 200 * MB
WS_SIZE = 256 * MB


def stamp(a, opts, idx, vprof=14):
    if not opts.get('prof'):
        return
    a(f"""
    s_memtime s[94:95]
    s_memrealtime s[96:97]
    s_waitcnt lgkmcnt(0)
    v_writelane_b32 v{vprof}, s94, {2*idx}
    v_writelane_b32 v{vprof}, s96, {2*idx+1}
    """)

def prof_end(a, opts, s_ws, kidx, vprof=14, vt=32):
    if not opts.get('prof'):
        return
    a("s_waitcnt vmcnt(0)")
    stamp(a, opts, 7, vprof)
    a(f"""
    s_lshl_b32 s94, s2, 2
    s_add_u32 s94, s94, s3
    s_lshl_b32 s94, s94, 6
    s_add_u32 s94, s94, {WS_PROF + kidx*65536*4}
    v_mbcnt_lo_u32_b32 v{vt}, -1, 0
    v_mbcnt_hi_u32_b32 v{vt}, -1, v{vt}
    v_lshlrev_b32 v{vt+1}, 2, v{vt}
    v_cmp_gt_u32 vcc, 16, v{vt}
    s_and_saveexec_b64 s[96:97], vcc
    buffer_store_dword v{vprof}, v{vt+1}, {sr(s_ws,4)}, s94 offen
    s_mov_b64 exec, s[96:97]
    """)
```

```python
from asmlib import *
import math, struct

S_W = 3
P = {1: dict(act=8, wgt=12, soffA=32, soffW=40, strideW=65, vDA0=4, vDA1=5, vDW0=6, vDW1=7, vW=16),
     2: dict(act=16, wgt=20, soffA=48, soffW=56, strideW=66, vDA0=8, vDA1=9, vDW0=10, vDW1=11, vW=24)}
S_WS = 24
S_M0 = 64
S_CNT = 67
S_ISV = 68
S_KIND = 69
S_OB1 = 70
S_OB2 = 71
V_LANE = 1
V_L16 = 2
V_A = 12
FR = [128, 192]
V_T = 32

def f2h(f): return "0x%08x" % struct.unpack("<I", struct.pack("<f", f))[0]
def act_frag(st, j): return FR[st] + 4*j
def wgt_frag(st, i): return FR[st] + 32 + 4*i

def reads(st, par, ks, prod):
    vW = P[prod]['vW']
    out = []
    for i in range(8):
        out.append(f"ds_read_b128 {vr(act_frag(st,i),4)}, v{V_A+ks} offset:{par*32768 + i*2048}")
        for r2 in range(2):
            out.append(f"ds_read_b64_tr_b16 {vr(wgt_frag(st,i)+2*r2,2)}, v{vW+i} offset:{par*32768 + ks*8192 + r2*1024}")
    return out

def mfmas(st, order, init):
    out = []
    for i in range(8):
        for j in range(8):
            acc = ar(4*(8*i + j), 4)
            w, x = vr(wgt_frag(st,i),4), vr(act_frag(st,j),4)
            A, B = (w, x) if order == 'WA' else (x, w)
            out.append(f"v_mfma_f32_16x16x32_bf16 {acc}, {A}, {B}, {'0' if init else acc}")
    return out

def dma_list(prod, par):
    p = P[prod]
    L = []
    for g in range(2):
        L.append(f"s_add_u32 m0, s{S_M0}, {par*32768 + g*4096}")
        for jj in range(4):
            j = 4*g + jj
            v = p['vDA0'] if j % 2 == 0 else p['vDA1']
            L.append(f"buffer_load_dwordx4 v{v}, {sr(p['act'],4)}, s{p['soffA']+j} offen offset:{jj*1024} lds")
    for g in range(2):
        L.append(f"s_add_u32 m0, s{S_M0}, {65536 + par*32768 + g*4096}")
        for jj in range(4):
            j = 4*g + jj
            v = p['vDW0'] if (j & 2) == 0 else p['vDW1']
            L.append(f"buffer_load_dwordx4 v{v}, {sr(p['wgt'],4)}, s{p['soffW']+j} offen offset:{jj*1024} lds")
    adv = [f"v_add_u32 v{p['vDA0']}, 128, v{p['vDA0']}",
           f"v_add_u32 v{p['vDA1']}, 128, v{p['vDA1']}",
           f"v_add_u32 v{p['vDW0']}, s{p['strideW']}, v{p['vDW0']}",
           f"v_add_u32 v{p['vDW1']}, s{p['strideW']}, v{p['vDW1']}"]
    return L, adv

def place_dma(fill, prod, par, slots):
    L, adv = dma_list(prod, par)
    si = 0
    for ins in L:
        if ins.startswith("s_add"):
            s = slots[si] - 1
            fill.setdefault(s, []).append(ins)
            if s < 0: fill[s].append("s_nop 0")
        else:
            fill.setdefault(slots[si], []).append(ins); si += 1
    for k, ins in enumerate(adv):
        fill.setdefault(slots[-1] + 1 + k, []).append(ins)

def kstep(fill, ms, use_set, order, init, rd, opts):
    base = len(ms)
    ms += mfmas(use_set, order, init)
    fill.setdefault(base - 1, []).append("s_waitcnt lgkmcnt(0)")
    if rd is not None:
        for k, ins in enumerate(reads(*rd)):
            fill.setdefault(base + 1 + k*opts['rstride'], []).append(ins)

def emit(a, ms, fill):
    for ins in interleave(ms, fill):
        a(ins)

def sync(a):
    a("s_waitcnt vmcnt(0) lgkmcnt(0)")
    a("s_barrier")

def pre_body(a, order, wprod, opts):
    ms, fill = [], {}
    kstep(fill, ms, 0, order, True, (1, 0, 1, wprod), opts)
    emit(a, ms, fill); sync(a)

def body(a, par, order, wprod, dma, opts):
    ms, fill = [], {}
    n = 1 - par
    kstep(fill, ms, 1, order, False, (0, n, 0, wprod), opts)
    kstep(fill, ms, 0, order, False, (1, n, 1, wprod), opts)
    if dma is not None:
        place_dma(fill, dma, par, opts['dma_slots'])
    emit(a, ms, fill); sync(a)

def post_body(a, par, order, wprod_next, dma, opts):
    ms, fill = [], {}
    kstep(fill, ms, 1, order, False, None if wprod_next is None else (0, 1 - par, 0, wprod_next), opts)
    if dma is not None:
        place_dma(fill, dma, par, list(range(2, 50, 3)))
    emit(a, ms, fill)

def rd_acc(a, dst, t):
    for r in range(4):
        a(f"v_accvgpr_read_b32 v{dst+r}, a{4*t+r}")

def epi_plain(a, kind):
    sob = S_OB2 if kind == 'Q' else S_OB1
    a("s_nop 7")
    n = 0
    if kind == 'Q':
        a(f"s_mov_b32 s73, {f2h(math.log2(math.e) / 16.0)}")
    for o in range(8):
        for p in range(4):
            T = V_T + 12*(n % 6); n += 1
            t0, t1 = (8*(2*p) + o, 8*(2*p+1) + o) if kind != 'V' else (8*o + 2*p, 8*o + 2*p + 1)
            rd_acc(a, T, t0); rd_acc(a, T + 4, t1)
            if kind == 'Q':
                for r in range(8):
                    a(f"v_mul_f32 v{T+r}, s73, v{T+r}")
            for r in range(4):
                a(f"v_cvt_pk_bf16_f32 v{T+8+r}, v{T+2*r}, v{T+2*r+1}")
            if kind == 'V':
                if o % 4 == 0:
                    pass
                a(f"s_add_u32 s72, s{sob}, {p*16384 + (o>>2)*4096}")
                a(f"buffer_store_dwordx4 {vr(T+8,4)}, v{V_L16}, {sr(S_WS,4)}, s72 offen offset:{(o&3)*1024}")
            else:
                if p == 0:
                    a(f"s_add_u32 s72, s{sob}, {o*8192}")
                a(f"buffer_store_dwordx4 {vr(T+8,4)}, v{V_L16}, {sr(S_WS,4)}, s72 offen offset:{p*1024}")

def epi_ffn(a):
    c0 = -2.0 * math.log2(math.e) * math.sqrt(2.0 / math.pi)
    c1 = c0 * 0.044715
    VC = 127
    a(f"s_mov_b32 s73, {f2h(c1)}")
    a(f"v_mov_b32 v{VC}, {f2h(c0)}")
    a("s_nop 7")
    n = 0
    for j in range(8):
        for p in range(2):
            T = V_T + 28*(n % 3); n += 1
            G, U, X, O = T, T + 8, T + 16, T + 24
            for h in range(2):
                i = 2*p + h
                rd_acc(a, G + 4*h, 8*i + j)
                rd_acc(a, U + 4*h, 8*(i + 4) + j)
            for r in range(8): a(f"v_mul_f32 v{X+r}, v{G+r}, v{G+r}")
            for r in range(8): a(f"v_fma_f32 v{X+r}, v{X+r}, s73, v{VC}")
            for r in range(8): a(f"v_mul_f32 v{X+r}, v{X+r}, v{G+r}")
            for r in range(8): a(f"v_exp_f32 v{X+r}, v{X+r}")
            for r in range(8): a(f"v_mul_f32 v{G+r}, v{G+r}, v{U+r}")
            for r in range(8): a(f"v_add_f32 v{X+r}, 1.0, v{X+r}")
            for r in range(8): a(f"v_rcp_f32 v{X+r}, v{X+r}")
            a("s_nop 0")
            for r in range(8): a(f"v_mul_f32 v{G+r}, v{G+r}, v{X+r}")
            for r in range(4): a(f"v_cvt_pk_bf16_f32 v{O+r}, v{G+2*r}, v{G+2*r+1}")
            if p == 0:
                a(f"s_add_u32 s72, s{S_OB2}, {j*184*1024}")
            a(f"buffer_store_dwordx4 {vr(O,4)}, v{V_L16}, {sr(S_WS,4)}, s72 offen offset:{p*1024}")

def gate_tile(a):
    a(f"""
    s_waitcnt vmcnt(0)
    s_mov_b32 s12, s88
    s_mov_b32 s13, s89
    s_mov_b32 s14, 896
    s_mov_b32 s15, 0x20000
    s_lshl_b32 s74, s82, 7
    s_lshl_b32 s75, s{S_W}, 5
    s_add_u32 s74, s74, s75
    v_and_b32 v32, 31, v{V_LANE}
    v_add_u32 v32, s74, v32
    v_lshrrev_b32 v33, 5, v{V_LANE}
    v_lshlrev_b32 v33, 4, v33
    s_movk_i32 s75, 896
    v_mul_lo_u32 v34, v32, s75
    v_add_u32 v34, v34, v33
    v_mov_b32 v35, 0
    """)
    for t in range(28):
        b = 40 + 8*(t % 4)
        a(f"buffer_load_dwordx4 {vr(b,4)}, v34, s[16:19], 0 offen offset:{t*32}")
        a(f"buffer_load_dwordx4 {vr(b+4,4)}, v33, s[12:15], 0 offen offset:{t*32}")
        if t % 4 == 3:
            a("s_waitcnt vmcnt(0)")
            for tt in range(4):
                bb = 40 + 8*tt
                for r in range(4):
                    a(f"v_dot2_f32_bf16 v35, v{bb+r}, v{bb+4+r}, v35")
    a(f"""
    s_nop 3
    v_mov_b32 v36, v35
    s_nop 1
    v_permlane32_swap_b32 v35, v36
    s_nop 1
    v_add_f32 v35, v35, v36
    v_mul_f32 v35, 0xbfb8aa3b, v35
    v_exp_f32 v35, v35
    s_nop 0
    v_add_f32 v35, 1.0, v35
    v_rcp_f32 v35, v35
    v_lshlrev_b32 v32, 2, v32
    v_add_u32 v32, {WS_G}, v32
    v_cmp_gt_u32 vcc, 32, v{V_LANE}
    s_and_saveexec_b64 s[76:77], vcc
    buffer_store_dword v35, v32, {sr(S_WS,4)}, 0 offen
    s_mov_b64 exec, s[76:77]
    """)

def gen_k1(a, opts):
    name = "k1_proj_kernel"
    L = V_LANE
    a.raw(kernel_header(name))
    a(f"""
    s_cmp_ge_u32 s2, 256
    s_cbranch_scc1 K1_END
    s_load_dwordx2 s[72:73], s[0:1], 0
    s_load_dwordx2 s[74:75], s[0:1], 8
    s_load_dwordx2 s[76:77], s[0:1], 16
    s_load_dwordx2 s[78:79], s[0:1], 24
    s_load_dwordx2 s[80:81], s[0:1], 32
    s_load_dwordx2 s[84:85], s[0:1], 56
    s_load_dwordx2 s[86:87], s[0:1], 64
    s_load_dwordx2 s[88:89], s[0:1], 80
    s_load_dwordx2 s[90:91], s[0:1], 104
    v_lshrrev_b32 v3, 6, v0
    v_and_b32 v{L}, 63, v0
    s_nop 0
    v_readfirstlane_b32 s3, v3
    """)
    stamp(a, opts, 0)
    a(f"""
    s_and_b32 s4, s2, 7
    s_lshr_b32 s5, s2, 3
    s_and_b32 s6, s5, 3
    s_lshl_b32 s7, s4, 2
    s_add_u32 s6, s6, s7
    s_and_b32 s{S_ISV}, s6, 1
    s_lshr_b32 s6, s6, 1
    s_lshr_b32 s7, s5, 2
    s_lshl_b32 s{S_M0}, s3, 13
    s_waitcnt lgkmcnt(0)
    """)
    a(f"""
    s_mov_b32 s8, s74
    s_mov_b32 s9, s75
    s_mov_b32 s10, {2048*2048}
    s_mov_b32 s11, 0x20000
    s_cmp_eq_u32 s{S_ISV}, 0
    s_cselect_b32 s12, s78, s80
    s_cselect_b32 s13, s79, s81
    s_mov_b32 s14, {1024*8192}
    s_mov_b32 s15, 0x20000
    s_mov_b32 s16, s72
    s_mov_b32 s17, s73
    s_mov_b32 s18, {2048*896}
    s_mov_b32 s19, 0x20000
    s_mov_b32 s24, s90
    s_mov_b32 s25, s91
    s_mov_b32 s26, {WS_SIZE}
    s_mov_b32 s27, 0x20000
    s_cmp_ge_u32 s5, 16
    s_cselect_b32 s{S_KIND}, 1, 0
    s_cmp_ge_u32 s5, 30
    s_cselect_b32 s{S_KIND}, 2, s{S_KIND}
    s_cmp_ge_u32 s3, 2
    s_cselect_b32 s20, s86, s84
    s_cselect_b32 s21, s87, s85
    s_cmp_eq_u32 s{S_KIND}, 1
    s_cselect_b32 s20, s20, s76
    s_cselect_b32 s21, s21, s77
    s_movk_i32 s83, 8192
    s_cselect_b32 s83, 3584, s83
    s_mul_i32 s22, s83, 448
    s_mov_b32 s23, 0x20000
    """)
    for j in range(8):
        a(f"s_mov_b32 s{P[1]['soffA']+j}, {j*16384 - (j&3)*1024}")
        a(f"s_mov_b32 s{P[1]['soffW']+j}, {j*32768 - (j&3)*1024}")
        a(f"s_mov_b32 s{P[2]['soffA']+j}, {j*7168 - (j&3)*1024}")
        a(f"s_mul_i32 s{P[2]['soffW']+j}, s83, {4*j}")
        if j & 3:
            a(f"s_sub_u32 s{P[2]['soffW']+j}, s{P[2]['soffW']+j}, {(j&3)*1024}")
    a(f"""
    s_mov_b32 s{P[1]['strideW']}, {64*8192}
    s_lshl_b32 s{P[2]['strideW']}, s83, 6
    s_and_b32 s28, s5, 1
    s_lshl_b32 s29, s4, 1
    s_add_u32 s28, s28, s29
    s_lshr_b32 s29, s5, 1
    s_and_b32 s29, s29, 7
    s_sub_u32 s30, s5, 16
    s_cmp_eq_u32 s{S_KIND}, 1
    s_cselect_b32 s29, s4, s29
    """)
    a(f"""
    v_lshrrev_b32 v32, 3, v{L}
    v_lshrrev_b32 v33, 4, v{L}
    v_and_b32 v34, 7, v{L}
    v_xor_b32 v34, v34, v33
    v_lshlrev_b32 v34, 4, v34
    s_lshl_b32 s92, s3, 6
    s_lshl_b32 s93, s7, 8
    s_add_u32 s93, s93, s92
    v_add_u32 v35, s93, v32
    v_lshlrev_b32 v35, 11, v35
    v_add_u32 v{P[1]['vDA0']}, v35, v34
    v_xor_b32 v{P[1]['vDA1']}, 64, v{P[1]['vDA0']}
    s_lshl_b32 s93, s29, 8
    s_add_u32 s93, s93, s92
    v_add_u32 v35, s93, v32
    s_movk_i32 s93, 896
    v_mul_lo_u32 v35, v35, s93
    v_add_u32 v{P[2]['vDA0']}, v35, v34
    v_xor_b32 v{P[2]['vDA1']}, 64, v{P[2]['vDA0']}
    """)
    a(f"""
    v_bfe_u32 v36, v{L}, 1, 3
    v_xor_b32 v36, v36, v33
    v_lshlrev_b32 v36, 5, v36
    v_and_b32 v37, 1, v{L}
    v_lshl_add_u32 v36, v37, 4, v36
    v_xor_b32 v38, 128, v36
    s_and_b32 s92, s3, 1
    s_lshl_b32 s92, s92, 5
    v_add_u32 v37, s92, v33
    s_lshr_b32 s92, s3, 1
    s_lshl_b32 s93, s6, 9
    s_lshl_b32 s31, s92, 8
    s_add_u32 s93, s93, s31
    v_lshlrev_b32 v39, 13, v37
    v_add3_u32 v{P[1]['vDW0']}, v39, v36, s93
    v_add3_u32 v{P[1]['vDW1']}, v39, v38, s93
    s_lshl_b32 s93, s28, 9
    s_add_u32 s93, s93, s31
    s_lshl_b32 s31, s30, 8
    s_cmp_eq_u32 s{S_KIND}, 1
    s_cselect_b32 s93, s31, s93
    v_mul_lo_u32 v39, v37, s83
    v_add3_u32 v{P[2]['vDW0']}, v39, v36, s93
    v_add3_u32 v{P[2]['vDW1']}, v39, v38, s93
    """)
    a(f"""
    v_and_b32 v32, 15, v{L}
    v_lshrrev_b32 v34, 1, v32
    v_xor_b32 v34, v34, v33
    s_and_b32 s92, s3, 1
    s_lshl_b32 s92, s92, 7
    v_add_u32 v35, s92, v32
    v_lshlrev_b32 v35, 7, v35
    """)
    for s in range(2):
        a(f"v_xor_b32 v36, {4*s}, v34")
        a(f"v_lshl_add_u32 v{V_A+s}, v36, 4, v35")
    a(f"""
    v_bfe_u32 v34, v{L}, 2, 2
    v_lshlrev_b32 v35, 11, v33
    v_lshl_add_u32 v35, v34, 8, v35
    v_and_b32 v36, 3, v{L}
    v_lshl_add_u32 v35, v36, 3, v35
    v_add_u32 v35, 0x10000, v35
    v_and_b32 v36, 1, v33
    v_lshl_or_b32 v34, v36, 2, v34
    s_lshr_b32 s92, s3, 1
    s_lshl_b32 s93, s92, 14
    s_lshl_b32 s31, s92, 2
    s_cmp_eq_u32 s{S_KIND}, 1
    s_cselect_b64 vcc, -1, 0
    """)
    for i in range(8):
        a(f"v_xor_b32 v36, {i}, v34")
        a(f"v_lshl_add_u32 v36, v36, 5, v35")
        a(f"v_add_u32 v{P[1]['vW']+i}, s93, v36")
        a(f"s_add_u32 s94, s31, {i & 3}")
        a(f"v_xor_b32 v36, s94, v34")
        a(f"v_lshl_add_u32 v36, v36, 5, v35")
        a(f"v_add_u32 v36, {(i>>2)*16384}, v36")
        a(f"v_cndmask_b32 v{P[2]['vW']+i}, v{P[1]['vW']+i}, v36, vcc")
    a(f"v_lshlrev_b32 v{V_L16}, 4, v{L}")
    a(f"""
    s_and_b32 s92, s3, 1
    s_lshr_b32 s93, s3, 1
    s_lshl_b32 s4, s6, 7
    s_lshl_b32 s5, s7, 4
    s_add_u32 s4, s4, s5
    s_lshl_b32 s5, s92, 3
    s_add_u32 s4, s4, s5
    s_lshl_b32 s4, s4, 13
    s_lshl_b32 s5, s93, 12
    s_add_u32 s5, s4, s5
    s_add_u32 s5, s5, {WS_K}
    s_lshl_b32 s31, s93, 13
    s_add_u32 s4, s4, s31
    s_add_u32 s4, s4, {WS_V}
    s_cmp_eq_u32 s{S_ISV}, 0
    s_cselect_b32 s{S_OB1}, s5, s4
    s_lshl_b32 s4, s28, 7
    s_lshl_b32 s5, s29, 4
    s_lshl_b32 s31, s92, 3
    s_add_u32 s5, s5, s31
    s_add_u32 s4, s4, s5
    s_lshl_b32 s4, s4, 13
    s_lshl_b32 s6, s93, 12
    s_add_u32 s4, s4, s6
    s_add_u32 s4, s4, {WS_Q}
    s_mul_i32 s5, s5, 184
    s_lshl_b32 s6, s30, 2
    s_add_u32 s5, s5, s6
    s_lshl_b32 s6, s93, 1
    s_add_u32 s5, s5, s6
    s_add_u32 s5, s5, 128
    s_lshl_b32 s5, s5, 10
    s_add_u32 s5, s5, {WS_ACT}
    s_cmp_eq_u32 s{S_KIND}, 1
    s_cselect_b32 s{S_OB2}, s5, s4
    s_and_b32 s4, s2, 7
    s_lshr_b32 s5, s2, 3
    s_lshl_b32 s4, s4, 1
    s_add_u32 s4, s4, s5
    s_sub_u32 s82, s4, 30
    """)
    for par in range(2):
        Ls, adv = dma_list(1, par)
        for ins in Ls:
            a(ins)
            if ins.startswith("s_add"): a("s_nop 0")
        for ins in adv: a(ins)
    a("s_waitcnt vmcnt(16)\ns_barrier")
    for ins in reads(0, 0, 0, 1): a(ins)
    a(f"s_cmp_eq_u32 s{S_ISV}, 1\ns_cbranch_scc1 K1_V")
    for order, kind in (('WA', 'K'), ('AW', 'V')):
        if kind == 'V':
            a.label("K1_V")
        pre_body(a, order, 1, opts)
        a(f"s_mov_b32 s{S_CNT}, 7")
        a.label(f"K1_LOOP_{kind}")
        body(a, 0, order, 1, 1, opts)
        body(a, 1, order, 1, 1, opts)
        a(f"s_sub_u32 s{S_CNT}, s{S_CNT}, 1\ns_cmp_lg_u32 s{S_CNT}, 0\ns_cbranch_scc1 K1_LOOP_{kind}")
        body(a, 0, order, 1, 2, opts)
        post_body(a, 1, order, 2, 2, opts)
        stamp(a, opts, 1)
        epi_plain(a, kind)
        stamp(a, opts, 2)
        if kind == 'K':
            a("s_branch K1_T2")
    a.label("K1_T2")
    a(f"s_cmp_eq_u32 s{S_KIND}, 2\ns_cbranch_scc1 K1_GATE")
    pre_body(a, 'WA', 2, opts)
    a(f"s_mov_b32 s{S_CNT}, 2")
    a.label("K1_LOOP_T2")
    body(a, 0, 'WA', 2, 2, opts)
    body(a, 1, 'WA', 2, 2, opts)
    a(f"s_sub_u32 s{S_CNT}, s{S_CNT}, 1\ns_cmp_lg_u32 s{S_CNT}, 0\ns_cbranch_scc1 K1_LOOP_T2")
    body(a, 0, 'WA', 2, 2, opts)
    body(a, 1, 'WA', 2, None, opts)
    post_body(a, 0, 'WA', None, None, opts)
    stamp(a, opts, 3)
    a(f"s_cmp_eq_u32 s{S_KIND}, 1\ns_cbranch_scc1 K1_EPI_F")
    epi_plain(a, 'Q')
    a("s_branch K1_DONE")
    a.label("K1_EPI_F")
    epi_ffn(a)
    a("s_branch K1_DONE")
    a.label("K1_GATE")
    gate_tile(a)
    a.label("K1_DONE")
    prof_end(a, opts, S_WS, 0)
    a.label("K1_END")
    a("s_endpgm")
    return name, kernel_desc(name, 512, 102, 256)
```

```python
from asmlib import *
from sched import *
import math, struct

LDS = 131072
def f2h(f): return "0x%08x" % struct.unpack("<I", struct.pack("<f", f))[0]

S_W = 3
SRD_K, SRD_V, SRD_WS, SRD_DBG = 8, 12, 16, 20
S_H, S_I, S_ROLE = 24, 25, 26
S_LQ, S_U0, S_N, S_EK = 27, 28, 29, 30
S_CNT = 31
S_KOFF, S_KEND, S_VOFF, S_VEND = 32, 33, 34, 35
S_M0 = 36
S_SIZE = 37
S_D0 = 38
S_MASKU = 39
S_T = 40
S_FIRST = 41
S_T0 = 44
V_LANE, V_RK, V_RV, V_D0, V_D1 = 1, 2, 3, 4, 5
V_MA = 6
V_NEG = 7
V_MX = 8
V_T = 112
V_PROF = 15
SB = [16, 48]
V_P = 80
V_MN = 96
V_L = 104
V_O = 128
A_Q = 0
A_ONE = 64
KRING, VRING = 16, 24
A_K = 68
A_V = A_K + 4*KRING
assert A_V + 4*VRING <= 256

def S(b, jb, qh): return SB[b] + 4*(2*jb + qh)
def O(i, qh): return V_O + 4*(2*i + qh)
def Pf(t2, qh): return V_P + 4*(2*t2 + qh)
def Qf(p, qh): return A_Q + 4*(2*p + qh)
def Kr(f): return A_K + 4*(f % KRING)
def Vr(f): return A_V + 4*(f % VRING)

def k_read(f, par):
    return (f"ds_read_b128 {ar(Kr(f),4)}, v{V_RK} offset:{par*32768 + f*1024}", ('rd', ('K', f)))
def v_read(f, par):
    return (f"ds_read_b128 {ar(Vr(f),4)}, v{V_RV} offset:{par*32768 + f*1024}", ('rd', ('V', f)))

MF = "v_mfma_f32_16x16x32_bf16"
def qk_mfmas(nb, cinit=True):
    out = []
    for jb in range(4):
        for p in range(8):
            for qh in range(2):
                f = 8*jb + p
                d = vr(S(nb, jb, qh), 4)
                c = vr(V_MN + 4*qh, 4) if p == 0 else d
                out.append((f"{MF} {d}, {ar(Kr(f),4)}, {ar(Qf(p,qh),4)}, {c}", [('K', f)]))
    return out
def pv_mfmas():
    out = []
    for t2 in range(2):
        for i in range(16):
            for qh in range(2):
                f = 16*t2 + i
                d = vr(O(i, qh), 4)
                out.append((f"{MF} {d}, {ar(Vr(f),4)}, {vr(Pf(t2,qh),4)}, {d}", [('V', f)]))
        for qh in range(2):
            d = vr(V_L + 4*qh, 4)
            out.append((f"{MF} {d}, {ar(A_ONE,4)}, {vr(Pf(t2,qh),4)}, {d}", []))
    return out

def softmax_ops(b, t2):
    ops = []
    for jb in (2*t2, 2*t2 + 1):
        for qh in range(2):
            s = S(b, jb, qh)
            for r in range(4):
                ops.append((f"v_exp_f32 v{s+r}, v{s+r}", 2))
    cv = []
    for qh in range(2):
        for hh in range(2):
            s = S(b, 2*t2 + hh, qh)
            for r in range(2):
                cv.append((f"v_cvt_pk_bf16_f32 v{Pf(t2,qh)+2*hh+r}, v{s+2*r}, v{s+2*r+1}", 1))
    return ops, cv

def dma_ops(srd, soff, m0base):
    L = []
    for g in range(2):
        L.append((f"s_add_u32 m0, s{S_M0}, {m0base + g*4096}", 'm0'))
        for j in range(4):
            L.append((f"buffer_load_dwordx4 v{V_D0 if g == 0 else V_D1}, {sr(srd,4)}, s{soff} offen offset:{j*1024} lds", 'dma'))
    return L

def dma_scalar(srd, off, end):
    return [f"s_cmp_lt_u32 s{off}, s{end}", f"s_cselect_b32 s{srd+2}, s{S_SIZE}, 0"]

def mask_block(a, b):
    a(f"v_subrev_u32 v{V_T}, s{S_D0}, v{V_MA}")
    el = [(jb, qh, r) for jb in range(4) for qh in range(2) for r in range(4)]
    for c in range(0, 32, 4):
        for k in range(4):
            jb, qh, r = el[c + k]
            a(f"v_cmp_ge_i32 s[{S_T0+2*k}:{S_T0+2*k+1}], {16*qh - 16*jb - r}, v{V_T}" if -16 <= 16*qh - 16*jb - r <= 64 else
              f"v_mov_b32 v{V_T+1+k}, {16*qh - 16*jb - r}\n v_cmp_ge_i32 s[{S_T0+2*k}:{S_T0+2*k+1}], v{V_T+1+k}, v{V_T}")
        a("s_nop 1")
        for k in range(4):
            jb, qh, r = el[c + k]
            a(f"v_cndmask_b32 v{S(b,jb,qh)+r}, v{V_NEG}, v{S(b,jb,qh)+r}, s[{S_T0+2*k}:{S_T0+2*k+1}]")

def rescale_block(a, b, first):
    a("s_nop 7\ns_nop 3")
    for qh in range(2):
        x, y = V_T + 2*qh, V_T + 2*qh + 1
        regs = [S(b, jb, qh) + r for jb in range(4) for r in range(4)]
        a(f"v_max3_f32 v{x}, v{regs[0]}, v{regs[1]}, v{regs[2]}")
        for k in range(3, 15, 2):
            a(f"v_max3_f32 v{x}, v{x}, v{regs[k]}, v{regs[k+1]}")
        a(f"v_max_f32 v{x}, v{x}, v{regs[15]}")
        a(f"v_mov_b32 v{y}, v{x}\ns_nop 1\nv_permlane16_swap_b32 v{x}, v{y}\ns_nop 1\nv_max_f32 v{x}, v{x}, v{y}")
        a(f"v_mov_b32 v{y}, v{x}\ns_nop 1\nv_permlane32_swap_b32 v{x}, v{y}\ns_nop 1\nv_max_f32 v{x}, v{x}, v{y}")
        if first:
            a(f"v_cmp_gt_f32 vcc, {f2h(-1e20)}, v{x}\ns_nop 1\nv_cndmask_b32 v{x}, v{x}, 0, vcc".replace("v_cndmask_b32 v%d, v%d, 0, vcc" % (x, x), "v_cndmask_b32_e64 v%d, v%d, 0, vcc" % (x, x)))
        else:
            a(f"v_max_f32 v{x}, 0, v{x}")
        for rg in regs:
            a(f"v_sub_f32 v{rg}, v{rg}, v{x}")
        for r in range(4):
            a(f"v_sub_f32 v{V_MN+4*qh+r}, v{V_MN+4*qh+r}, v{x}")
        if not first:
            a(f"v_sub_f32 v{y}, 0, v{x}\nv_exp_f32 v{y}, v{y}\ns_nop 0")
            for i in range(16):
                for r in range(4):
                    a(f"v_mul_f32 v{O(i,qh)+r}, v{O(i,qh)+r}, v{y}")
            for r in range(4):
                a(f"v_mul_f32 v{V_L+4*qh+r}, v{V_L+4*qh+r}, v{y}")
    a("s_nop 1")

def iteration(a, par, tail, opts, carried, lbl):
    nb = 1 - par
    ms = ([] if tail else qk_mfmas(nb)) + pv_mfmas()
    X = 0 if tail else 64
    sc = Sched(ms, 2)
    e0, c0 = softmax_ops(par, 0)
    e1, c1 = softmax_ops(par, 1)
    if tail:
        for ins, _ in e0 + c0: sc.pre.append((ins, None))
        for f in range(4): sc.pre.append(v_read(f, par))
        sc.pre.append(("s_nop 1", None))
        s = 0
        for ins, c in e1: s = sc.put(s, ins, c) + 1
        s += 1
        for ins, c in c1: s = sc.put(s, ins, c) + 0
        assert s < 32, s
        for f in range(4, 32):
            ins, meta = v_read(f, par)
            use = 2*f if f < 16 else 2*f + 2
            sc.put(max(0, use - 12), ins, 1, meta, force=True)
        body, out, nw = insert_lgkm_waits(sc.flat(), carried, opts['kslack'])
        for ins in body: a(ins)
        return out
    s = 1
    for ins, c in e0:
        s = sc.put(s, ins, c) + opts['e0_step']
    s = s - opts['e0_step'] + 2
    for ins, c in c0:
        s = sc.put(s, ins, c)
    assert s <= 61, s
    s = max(opts['e1_start'], 0)
    for ins, c in e1:
        s = sc.put(s, ins, c) + opts['e1_step']
    s = s - opts['e1_step'] + 2
    for ins, c in c1:
        s = sc.put(s, ins, c)
    assert s <= 95, s
    NPRE = opts['npre']
    for f in range(NPRE, 32):
        ins, meta = k_read(f, nb)
        got = sc.put(max(0, 2*f - opts['klead']), ins, 1, meta)
        assert got <= 2*f - 4, (f, got)
        assert f < KRING or got > 2*(f - KRING) + 1
    s = 0
    s = sc.put(s, "\n".join(dma_scalar(SRD_V, S_VOFF, S_VEND)), 2)
    s += 1
    for ins, kind in dma_ops(SRD_V, S_VOFF, 65536 + nb*32768):
        s = sc.put(s, ins, 1 if kind == 'm0' else opts['dmacost']) + 1
    sc.put(s, f"s_add_u32 s{S_VOFF}, s{S_VOFF}, 0x8000", 1)
    vs, ve = opts['v_start'], opts['v_end']
    for f in range(32):
        ins, meta = v_read(f, par)
        use = 64 + 2*f if f < 16 else 66 + 2*f
        got = sc.put(vs + (ve - vs)*f // 31, ins, 1, meta)
        assert got <= use - 4, (f, got, use)
        if f >= VRING:
            prev = f - VRING
            assert got > (64 + 2*prev if prev < 16 else 66 + 2*prev) + 1
    mslot = 68
    sc.put(mslot, f"s_cmp_gt_i32 s{S_MASKU}, 0\n s_cbranch_scc1 {lbl}_NOMASK\n MASKBLOCK\n{lbl}_NOMASK:", 2, None, force=True)
    regs = [SB[nb] + r for r in range(32)]
    s = mslot + 2
    s = sc.put(s, f"v_max3_f32 v{V_MX}, v{regs[0]}, v{regs[1]}, v{regs[2]}", 1) + 1
    for k in range(3, 31, 2):
        s = sc.put(s, f"v_max3_f32 v{V_MX}, v{V_MX}, v{regs[k]}, v{regs[k+1]}", 1) + 1
    s = sc.put(s, f"v_max_f32 v{V_MX}, v{V_MX}, v{regs[31]}", 1) + 1
    s = sc.put(s + 1, f"v_cmp_lt_f32 vcc, s{S_T}, v{V_MX}", 1) + 1
    sc.put(s, f"s_sub_u32 s{S_MASKU}, s{S_MASKU}, 1", 1)
    sc.put(s, f"s_sub_u32 s{S_D0}, s{S_D0}, 64", 1)
    B = opts['bar']
    sc.put(B, "s_waitcnt vmcnt(0) lgkmcnt(0)", 1, ('drain',), force=True)
    sc.put(B, "s_barrier", 1, None, force=True)
    s = B + 1
    s = sc.put(s, "\n".join(dma_scalar(SRD_K, S_KOFF, S_KEND)), 2)
    def place_dma(dl, s):
        for ins, kind in dl:
            if kind == 'm0':
                s = sc.put(s, ins, 1) + 1
            else:
                s = sc.put(s, ins, opts['dmacost']) + 1
        return s
    place_dma(dma_ops(SRD_K, S_KOFF, nb*32768), s + 1)
    pre_s = len(ms) - 2*NPRE
    for f in range(NPRE):
        ins, meta = k_read(f, par)
        sc.put(max(B + 1, pre_s + 2*f - 2), ins, 1, meta, force=True)
    last = len(ms) - 1
    sc.put(last, f"s_add_u32 s{S_KOFF}, s{S_KOFF}, 0x8000", 1, None, force=True)
    body, out, nw = insert_lgkm_waits(sc.flat(), carried, opts['kslack'])
    if opts.get('verbose'):
        over = sum(max(0, -c) for c in sc.cap)
        print(f"iter par {par}: waits {nw}, free slots {sum(max(0,c) for c in sc.cap)}, over {over}, carried out {out}")
    for ins in body:
        if 'MASKBLOCK' in ins:
            parts = ins.split("\n")
            a(parts[0]); a(parts[1])
            mask_block(a, nb)
            a.label(f"{lbl}_NOMASK")
        else:
            a(ins)
    return out

def store_frags(a, srd, soff_reg, flags, src):
    pass

def gen_k2(a, opts):
    name = "k2_attn_kernel"
    L = V_LANE
    a.raw(kernel_header(name))
    a(f"""
    s_cmp_ge_u32 s2, 256
    s_cbranch_scc1 K2_END
    s_load_dwordx2 s[44:45], s[0:1], 104
    s_load_dwordx2 s[46:47], s[0:1], 96
    v_lshrrev_b32 v2, 6, v0
    v_and_b32 v{L}, 63, v0
    s_nop 0
    v_readfirstlane_b32 s{S_W}, v2
    """)
    stamp(a, opts, 0, V_PROF)
    a(f"""
    s_and_b32 s4, s2, 7
    s_lshr_b32 s5, s2, 3
    s_and_b32 s6, s5, 1
    s_lshl_b32 s{S_H}, s4, 1
    s_add_u32 s{S_H}, s{S_H}, s6
    s_lshr_b32 s5, s5, 1
    s_and_b32 s{S_I}, s5, 7
    s_lshr_b32 s{S_ROLE}, s5, 3
    s_lshl_b32 s{S_M0}, s{S_W}, 13
    s_mov_b32 s{S_SIZE}, {WS_SIZE}
    s_mov_b32 s{S_T}, {f2h(opts['thresh'])}
    v_lshlrev_b32 v{V_RK}, 4, v{L}
    v_add_u32 v{V_RV}, 0x10000, v{V_RK}
    v_add_u32 v{V_D0}, s{S_M0}, v{V_RK}
    v_add_u32 v{V_D1}, 0x1000, v{V_D0}
    v_lshrrev_b32 v{V_MA}, 4, v{L}
    v_lshlrev_b32 v{V_MA}, 2, v{V_MA}
    v_and_b32 v{V_T}, 15, v{L}
    v_sub_u32 v{V_MA}, v{V_MA}, v{V_T}
    v_mov_b32 v{V_NEG}, {f2h(-1e30)}
    v_mov_b32 v{V_T}, 0x3f803f80
    s_waitcnt lgkmcnt(0)
    """)
    for r in range(4):
        a(f"v_accvgpr_write_b32 a{A_ONE+r}, v{V_T}")
    for srd in (SRD_K, SRD_V, SRD_WS):
        a(f"s_mov_b32 s{srd}, s44\ns_mov_b32 s{srd+1}, s45\ns_mov_b32 s{srd+2}, {WS_SIZE}\ns_mov_b32 s{srd+3}, 0x20000")
    a(f"s_mov_b32 s{SRD_DBG}, s46\ns_mov_b32 s{SRD_DBG+1}, s47\ns_mov_b32 s{SRD_DBG+2}, 256\ns_mov_b32 s{SRD_DBG+3}, 0x20000")
    a(f"""
    s_sub_u32 s{S_LQ}, 15, s{S_I}
    s_lshl_b32 s4, s{S_I}, 1
    s_sub_u32 s5, 15, s4
    s_cmp_eq_u32 s{S_ROLE}, 0
    s_cselect_b32 s{S_U0}, 0, 17
    s_cselect_b32 s{S_N}, 17, s5
    s_cselect_b32 s{S_EK}, 2, 0
    """)
    a.label("K2_SEG")
    a(f"""
    s_barrier
    s_lshl_b32 s4, s{S_H}, 5
    s_add_u32 s4, s4, s{S_U0}
    s_lshl_b32 s4, s4, 15
    s_add_u32 s{S_KOFF}, s4, {WS_K}
    s_add_u32 s{S_VOFF}, s4, {WS_V}
    s_lshl_b32 s5, s{S_N}, 15
    s_add_u32 s{S_KEND}, s{S_KOFF}, s5
    s_add_u32 s{S_VEND}, s{S_VOFF}, s5
    s_mov_b32 s{SRD_K+2}, s{S_SIZE}
    s_mov_b32 s{SRD_V+2}, s{S_SIZE}
    """)
    def dma_now(srd, off, end, m0base):
        for ins in dma_scalar(srd, off, end): a(ins)
        for ins, kind in dma_ops(srd, off, m0base):
            a(ins)
            if kind == 'm0': a("s_nop 0")
        a(f"s_add_u32 s{off}, s{off}, 0x8000")
    dma_now(SRD_K, S_KOFF, S_KEND, 0)
    a(f"""
    s_lshl_b32 s4, s{S_H}, 7
    s_lshl_b32 s5, s{S_LQ}, 3
    s_add_u32 s4, s4, s5
    s_lshl_b32 s5, s{S_W}, 1
    s_add_u32 s4, s4, s5
    s_lshl_b32 s4, s4, 13
    s_add_u32 s4, s4, {WS_Q}
    """)
    for qh in range(2):
        for pg in range(2):
            a(f"s_add_u32 s5, s4, {qh*8192 + pg*4096}")
            for pp in range(4):
                p = 4*pg + pp
                a(f"buffer_load_dwordx4 {ar(Qf(p,qh),4)}, v{V_RK}, {sr(SRD_WS,4)}, s5 offen offset:{pp*1024}")
    dma_now(SRD_V, S_VOFF, S_VEND, 65536)
    dma_now(SRD_K, S_KOFF, S_KEND, 32768)
    for r in range(136):
        a(f"v_mov_b32 v{(V_O + r) if r < 128 else (V_L + r - 128)}, 0")
    for r in range(8):
        a(f"v_mov_b32 v{V_MN+r}, 0")
    a(f"""
    s_lshl_b32 s4, s{S_LQ}, 1
    s_sub_u32 s{S_MASKU}, s4, s{S_U0}
    s_lshl_b32 s4, s{S_LQ}, 7
    s_lshl_b32 s5, s{S_W}, 5
    s_add_u32 s4, s4, s5
    s_lshl_b32 s5, s{S_U0}, 6
    s_sub_u32 s{S_D0}, s4, s5
    s_waitcnt vmcnt(16)
    s_barrier
    """)
    ms = qk_mfmas(0)
    sc = Sched(ms, 2)
    for f in range(6): sc.pre.append(k_read(f, 0))
    for f in range(6, 32):
        ins, meta = k_read(f, 0)
        sc.put(2*f - 12, ins, 1, meta)
    body, out, _ = insert_lgkm_waits(sc.flat(), [], 4)
    for ins in body: a(ins)
    a("s_nop 7")
    a(f"s_cmp_gt_i32 s{S_MASKU}, 0\ns_cbranch_scc1 K2_P_NOMASK")
    mask_block(a, 0)
    a.label("K2_P_NOMASK")
    a(f"s_sub_u32 s{S_MASKU}, s{S_MASKU}, 1\ns_sub_u32 s{S_D0}, s{S_D0}, 64")
    rescale_block(a, 0, True)
    a("s_waitcnt vmcnt(0) lgkmcnt(0)\ns_barrier")
    dma_now(SRD_K, S_KOFF, S_KEND, 0)
    NPRE = opts['npre']
    for f in range(NPRE): a(k_read(f, 1)[0])
    carried = [('K', f) for f in range(NPRE)]
    stamp(a, opts, 1, V_PROF)
    if opts.get('prof'):
        for f in range(NPRE): a(k_read(f, 1)[0])
    a(f"s_sub_u32 s{S_CNT}, s{S_N}, 1")
    a.label("K2_LOOP")
    a(f"s_cmp_eq_u32 s{S_CNT}, 0\ns_cbranch_scc1 K2_TAIL0")
    out0 = iteration(a, 0, False, opts, carried, "K2_I0")
    assert out0 == carried, (out0, carried)
    a("s_cbranch_vccnz K2_RESC0")
    a.label("K2_BACK0")
    a(f"s_sub_u32 s{S_CNT}, s{S_CNT}, 1\ns_cmp_eq_u32 s{S_CNT}, 0\ns_cbranch_scc1 K2_TAIL1")
    out1 = iteration(a, 1, False, opts, carried, "K2_I1")
    assert out1 == carried
    a("s_cbranch_vccnz K2_RESC1")
    a.label("K2_BACK1")
    a(f"s_sub_u32 s{S_CNT}, s{S_CNT}, 1\ns_branch K2_LOOP")
    a.label("K2_RESC0")
    rescale_block(a, 1, False)
    a("s_branch K2_BACK0")
    a.label("K2_RESC1")
    rescale_block(a, 0, False)
    a("s_branch K2_BACK1")
    a.label("K2_TAIL0")
    iteration(a, 0, True, opts, carried, "K2_T0")
    a("s_branch K2_EPI")
    a.label("K2_TAIL1")
    iteration(a, 1, True, opts, carried, "K2_T1")
    a.label("K2_EPI")
    stamp(a, opts, 2, V_PROF)
    a("s_waitcnt vmcnt(0) lgkmcnt(0)\ns_nop 7")
    T = V_T
    a(f"""
    s_lshl_b32 s4, s{S_LQ}, 7
    s_lshl_b32 s5, s{S_W}, 5
    s_add_u32 s4, s4, s5
    v_and_b32 v{T}, 15, v{L}
    v_add_u32 v{T}, s4, v{T}
    v_lshlrev_b32 v{T}, 2, v{T}
    s_lshl_b32 s6, s{S_H}, 3
    s_add_u32 s6, s6, s{S_I}
    s_cmp_eq_u32 s{S_EK}, 0
    s_cbranch_scc1 K2_EPI_PART
    s_mov_b32 s7, {WS_G}
    buffer_load_dword v{T+1}, v{T}, {sr(SRD_WS,4)}, s7 offen
    buffer_load_dword v{T+2}, v{T}, {sr(SRD_WS,4)}, s7 offen offset:64
    s_cmp_eq_u32 s{S_EK}, 2
    s_cbranch_scc1 K2_EPI_MERGE
    s_waitcnt vmcnt(0)
    """)
    for qh in range(2):
        a(f"v_rcp_f32 v{T+4+qh}, v{V_L+4*qh}")
    a("s_nop 0")
    for qh in range(2):
        a(f"v_mul_f32 v{T+4+qh}, v{T+4+qh}, v{T+1+qh}")
    a.label("K2_EPI_SCALE")
    a(f"""
    s_lshl_b32 s4, s{S_LQ}, 3
    s_lshl_b32 s5, s{S_W}, 1
    s_add_u32 s4, s4, s5
    s_mul_i32 s4, s4, 184
    s_lshl_b32 s5, s{S_H}, 3
    s_add_u32 s4, s4, s5
    s_lshl_b32 s4, s4, 10
    s_add_u32 s4, s4, {WS_ACT}
    """)
    def scale_store(soff_expr, flags):
        n = 0
        for qh in range(2):
            for pg in range(2):
                a(soff_expr(qh, pg))
                for pp in range(4):
                    p = 4*pg + pp
                    rg = [O(2*p, qh) + r for r in range(4)] + [O(2*p + 1, qh) + r for r in range(4)]
                    for x in rg:
                        a(f"v_mul_f32 v{x}, v{x}, v{T+4+qh}")
                    D = SB[0] + 4*(n % 8); n += 1
                    for r in range(4):
                        a(f"v_cvt_pk_bf16_f32 v{D+r}, v{rg[2*r]}, v{rg[2*r+1]}")
                    a(f"buffer_store_dwordx4 {vr(D,4)}, v{V_RK}, {sr(SRD_WS,4)}, s5 offen offset:{pp*1024} {flags}")
    scale_store(lambda qh, pg: f"s_add_u32 s5, s4, {qh*184*1024 + pg*4096}", "")
    a(f"""
    s_cmp_eq_u32 s{S_ROLE}, 0
    s_cbranch_scc1 K2_DONE
    s_branch K2_DONE
    """)
    a.label("K2_EPI_PART")
    for qh in range(2):
        a(f"v_rcp_f32 v{T+4+qh}, v{V_L+4*qh}")
        a(f"v_cmp_lt_f32 vcc, 0, v{V_L+4*qh}")
        a(f"v_sub_f32 v{T+6+qh}, 0, v{V_MN+4*qh}")
        a("s_nop 1")
        a(f"v_cndmask_b32 v{T+4+qh}, 0, v{T+4+qh}, vcc")
        a(f"v_cndmask_b32 v{T+6+qh}, v{V_NEG}, v{T+6+qh}, vcc")
    a(f"""
    s_lshl_b32 s7, s6, 2
    s_add_u32 s7, s7, s{S_W}
    s_lshl_b32 s4, s7, 14
    s_add_u32 s4, s4, {WS_PO}
    """)
    scale_store(lambda qh, pg: f"s_add_u32 s5, s4, {qh*8192 + pg*4096}", "sc1")
    a(f"""
    s_lshl_b32 s5, s7, 10
    s_add_u32 s5, s5, {WS_PS}
    v_lshlrev_b32 v{T+8}, 3, v{L}
    v_mov_b32 v{T+10}, v{T+6}
    v_mov_b32 v{T+11}, v{V_L}
    v_mov_b32 v{T+12}, v{T+7}
    v_mov_b32 v{T+13}, v{V_L+4}
    buffer_store_dwordx2 v[{T+10}:{T+11}], v{T+8}, {sr(SRD_WS,4)}, s5 offen sc1
    buffer_store_dwordx2 v[{T+12}:{T+13}], v{T+8}, {sr(SRD_WS,4)}, s5 offen offset:512 sc1
    s_waitcnt vmcnt(0)
    s_barrier
    s_cmp_lg_u32 s{S_W}, 0
    s_cbranch_scc1 K2_NOFLAG
    s_lshr_b32 s4, s6, 1
    s_lshl_b32 s4, s4, 2
    s_and_b32 s5, s6, 1
    s_lshl_b32 s5, s5, 4
    s_lshl_b32 s5, 1, s5
    v_mov_b32 v{T+8}, s4
    v_mov_b32 v{T+9}, s5
    v_cmp_eq_u32 vcc, 0, v{L}
    s_and_saveexec_b64 s[6:7], vcc
    buffer_atomic_add v{T+9}, v{T+8}, {sr(SRD_DBG,4)}, 0 offen
    s_mov_b64 exec, s[6:7]
    """)
    a.label("K2_NOFLAG")
    a(f"""
    s_mov_b32 s{S_LQ}, s{S_I}
    s_mov_b32 s{S_U0}, 0
    s_lshl_b32 s{S_N}, s{S_I}, 1
    s_add_u32 s{S_N}, s{S_N}, 2
    s_mov_b32 s{S_EK}, 1
    s_branch K2_SEG
    """)
    a.label("K2_EPI_MERGE")
    a(f"""
    s_lshr_b32 s4, s6, 1
    s_lshl_b32 s4, s4, 2
    s_and_b32 s5, s6, 1
    s_lshl_b32 s5, s5, 4
    v_mov_b32 v{T+8}, s4
    s_mov_b32 s7, 0x40000
    """)
    a.label("K2_POLL")
    a(f"""
    buffer_load_dword v{T+9}, v{T+8}, {sr(SRD_DBG,4)}, 0 offen sc1
    s_waitcnt vmcnt(0)
    v_readfirstlane_b32 s4, v{T+9}
    s_nop 3
    s_lshr_b32 s4, s4, s5
    s_and_b32 s4, s4, 0xffff
    s_cmp_lg_u32 s4, 0
    s_cbranch_scc1 K2_POLLED
    s_sleep 4
    s_sub_u32 s7, s7, 1
    s_cmp_lg_u32 s7, 0
    s_cbranch_scc1 K2_POLL
    """)
    a.label("K2_POLLED")
    a(f"""
    s_lshl_b32 s7, s6, 2
    s_add_u32 s7, s7, s{S_W}
    s_lshl_b32 s4, s7, 14
    s_add_u32 s4, s4, {WS_PO}
    s_lshl_b32 s5, s7, 10
    s_add_u32 s5, s5, {WS_PS}
    v_lshlrev_b32 v{T+8}, 3, v{L}
    buffer_load_dwordx2 v[{T+10}:{T+11}], v{T+8}, {sr(SRD_WS,4)}, s5 offen sc1
    buffer_load_dwordx2 v[{T+12}:{T+13}], v{T+8}, {sr(SRD_WS,4)}, s5 offen offset:512 sc1
    """)
    for qh in range(2):
        for pg in range(2):
            a(f"s_add_u32 s5, s4, {qh*8192 + pg*4096}")
            for pp in range(4):
                p = 4*pg + pp
                a(f"buffer_load_dwordx4 {vr(SB[0] + 4*(8*qh + p), 4)}, v{V_RK}, {sr(SRD_WS,4)}, s5 offen offset:{pp*1024} sc1")
    a("s_waitcnt vmcnt(16)")
    for qh in range(2):
        mB, lB = T + 10 + 2*qh, T + 11 + 2*qh
        mA, wA, wB, dn = T + 3, T + 6, T + 7, T + 14
        a(f"""
        v_sub_f32 v{mA}, 0, v{V_MN+4*qh}
        v_max_f32 v{dn}, v{mA}, v{mB}
        v_sub_f32 v{wA}, v{mA}, v{dn}
        v_sub_f32 v{wB}, v{mB}, v{dn}
        v_exp_f32 v{wA}, v{wA}
        v_exp_f32 v{wB}, v{wB}
        s_nop 0
        v_mul_f32 v{wB}, v{wB}, v{lB}
        v_fma_f32 v{dn}, v{wA}, v{V_L+4*qh}, v{wB}
        v_rcp_f32 v{dn}, v{dn}
        s_nop 0
        v_mul_f32 v{dn}, v{dn}, v{T+1+qh}
        v_mul_f32 v{T+4+qh}, v{wA}, v{dn}
        v_mul_f32 v{mB}, v{wB}, v{dn}
        """)
    a(f"""
    s_lshl_b32 s4, s{S_LQ}, 3
    s_lshl_b32 s5, s{S_W}, 1
    s_add_u32 s4, s4, s5
    s_mul_i32 s4, s4, 184
    s_lshl_b32 s5, s{S_H}, 3
    s_add_u32 s4, s4, s5
    s_lshl_b32 s4, s4, 10
    s_add_u32 s4, s4, {WS_ACT}
    """)
    cnt = 0
    for qh in range(2):
        for pg in range(2):
            a(f"s_add_u32 s5, s4, {qh*184*1024 + pg*4096}")
            for pp in range(4):
                p = 4*pg + pp
                a(f"s_waitcnt vmcnt({15 - (8*qh + p) + cnt})")
                src = SB[0] + 4*(8*qh + p)
                rg = [O(2*p, qh) + r for r in range(4)] + [O(2*p + 1, qh) + r for r in range(4)]
                for r in range(4):
                    a(f"v_lshlrev_b32 v{V_P+2*r}, 16, v{src+r}")
                    a(f"v_and_b32 v{V_P+2*r+1}, 0xffff0000, v{src+r}")
                for k, x in enumerate(rg):
                    a(f"v_mul_f32 v{x}, v{x}, v{T+4+qh}")
                for k, x in enumerate(rg):
                    a(f"v_fma_f32 v{x}, v{V_P+k}, v{T+10+2*qh}, v{x}")
                for r in range(4):
                    a(f"v_cvt_pk_bf16_f32 v{src+r}, v{rg[2*r]}, v{rg[2*r+1]}")
                a(f"buffer_store_dwordx4 {vr(src,4)}, v{V_RK}, {sr(SRD_WS,4)}, s5 offen offset:{pp*1024}")
                cnt += 1
    a.label("K2_DONE")
    prof_end(a, opts, SRD_WS, 1, V_PROF, V_T)
    a.label("K2_END")
    a("s_endpgm")
    return name, kernel_desc(name, 512, 102, 256)
```

```python
from asmlib import *
from sched import *
import struct

GRID = 256
NSLOT = 6
SLOT = 14336
LSLOT = 16384
LDS = NSLOT * LSLOT
ADEPTH = 2 * NSLOT
def f2h(f): return "0x%08x" % struct.unpack("<I", struct.pack("<f", f))[0]

S_W = 3
SRD_WO, SRD_WD, SRD_W, SRD_WS, SRD_DBG, SRD_OUT = 8, 12, 16, 20, 24, 28
S_QT, S_MQ, S_KS = 32, 33, 34
S_N1 = 35
S_CNT = 36
S_WOFF = 37
S_AOFF = 38
S_LDST = 39
S_M0 = 40
S_A2, S_W2 = 41, 42
S_SC = 43
V_LANE, V_L16, V_RW, V_RW2 = 1, 2, 3, 16
V_DW = 4
V_G = 8
V_T = 10
V_ACC = 32
V_WF = 96
V_AF = 152
MF = "v_mfma_f32_16x16x32_bf16"

def acc(i, qb): return V_ACC + 4*(2*i + qb)
def wf(st, i): return V_WF + 28*st + 4*i
def af(step, qb): return V_AF + 8*(step % ADEPTH) + 4*qb

def w_reads(st, slot, p):
    out = []
    for i in range(7):
        for r2 in range(2):
            out.append((f"ds_read_b64_tr_b16 {vr(wf(st,i)+2*r2,2)}, v{V_RW if slot < 4 else V_RW2} offset:{(slot % 4)*LSLOT + (32*p + 16*r2)*224 + 32*i}", ('rd', (st, i, r2))))
    return out

def load_stage(slot, astep):
    L = [f"s_add_u32 m0, s{S_M0}, {slot*LSLOT}"]
    for j in range(4):
        L.append(f"buffer_load_dwordx4 v{V_DW+j}, {sr(SRD_W,4)}, s{S_WOFF} offen lds" if j == 0 else
                 f"s_add_u32 m0, m0, 4096\n buffer_load_dwordx4 v{V_DW+j}, {sr(SRD_W,4)}, s{S_WOFF} offen lds")
    A = []
    for p in range(2):
        for qb in range(2):
            A.append(f"buffer_load_dwordx4 {vr(af(astep+p,qb),4)}, v{V_T+qb}, {sr(SRD_WS,4)}, s{S_AOFF} offen offset:{p*1024}")
    return L, A

def advance():
    return f"""s_add_u32 s{S_LDST}, s{S_LDST}, 1
    s_add_u32 s{S_WOFF}, s{S_WOFF}, {64*896}
    s_add_u32 s{S_AOFF}, s{S_AOFF}, 2048
    s_cmp_eq_u32 s{S_LDST}, s{S_N1}
    s_cselect_b32 s{S_WOFF}, s{S_W2}, s{S_WOFF}
    s_cselect_b32 s{S_AOFF}, s{S_A2}, s{S_AOFF}
    s_cselect_b32 s{SRD_W}, s{SRD_WO}, s{SRD_W}
    s_cselect_b32 s{SRD_W+1}, s{SRD_WO+1}, s{SRD_W+1}
    s_cselect_b32 s{SRD_W+2}, s{SRD_WO+2}, s{SRD_W+2}
    s_cmp_lt_u32 s{S_LDST}, 23
    s_cselect_b32 s{SRD_W+2}, s{SRD_W+2}, 0"""

def gen_k3(a, opts):
    name = "k3_out_kernel"
    L = V_LANE
    a.raw(kernel_header(name))
    a(f"""
    s_cmp_ge_u32 s2, {GRID}
    s_cbranch_scc1 K3_END
    s_load_dwordx2 s[44:45], s[0:1], 40
    s_load_dwordx2 s[46:47], s[0:1], 72
    s_load_dwordx2 s[48:49], s[0:1], 88
    s_load_dwordx2 s[50:51], s[0:1], 96
    s_load_dwordx2 s[52:53], s[0:1], 104
    v_lshrrev_b32 v2, 6, v0
    v_and_b32 v{L}, 63, v0
    s_nop 0
    v_readfirstlane_b32 s{S_W}, v2
    """)
    stamp(a, opts, 0, 15)
    a(f"""
    s_and_b32 s4, s2, 7
    s_lshr_b32 s5, s2, 3
    s_lshr_b32 s{S_KS}, s4, 1
    s_and_b32 s4, s4, 1
    s_lshl_b32 s4, s4, 3
    s_lshr_b32 s6, s5, 2
    s_add_u32 s{S_QT}, s4, s6
    s_and_b32 s{S_MQ}, s5, 3
    s_waitcnt lgkmcnt(0)
    s_mov_b32 s{SRD_WO}, s44
    s_mov_b32 s{SRD_WO+1}, s45
    s_mov_b32 s{SRD_WO+2}, {4096*896}
    s_mov_b32 s{SRD_WO+3}, 0x20000
    s_mov_b32 s{SRD_WD}, s46
    s_mov_b32 s{SRD_WD+1}, s47
    s_mov_b32 s{SRD_WD+2}, {1792*896}
    s_mov_b32 s{SRD_WD+3}, 0x20000
    s_mov_b32 s{SRD_WS}, s52
    s_mov_b32 s{SRD_WS+1}, s53
    s_mov_b32 s{SRD_WS+2}, {WS_SIZE}
    s_mov_b32 s{SRD_WS+3}, 0x20000
    s_mov_b32 s{SRD_DBG}, s50
    s_mov_b32 s{SRD_DBG+1}, s51
    s_mov_b32 s{SRD_DBG+2}, 256
    s_mov_b32 s{SRD_DBG+3}, 0x20000
    s_mov_b32 s{SRD_OUT}, s48
    s_mov_b32 s{SRD_OUT+1}, s49
    s_mov_b32 s{SRD_OUT+2}, {2048*896}
    s_mov_b32 s{SRD_OUT+3}, 0x20000
    """)
    a(f"""
    s_mul_i32 s4, s{S_KS}, 46
    s_mov_b32 s{S_N1}, 0
    s_cmp_eq_u32 s{S_KS}, 2
    s_cselect_b32 s{S_N1}, 5, s{S_N1}
    s_cmp_eq_u32 s{S_KS}, 3
    s_cselect_b32 s{S_N1}, 23, s{S_N1}
    s_mul_i32 s{S_W2}, s4, {32*896}
    s_lshl_b32 s{S_A2}, s4, 10
    s_movk_i32 s5, 128
    s_cmp_eq_u32 s{S_KS}, 3
    s_cselect_b32 s5, 138, s5
    s_cmp_lt_u32 s{S_KS}, 2
    s_cselect_b32 s5, s4, s5
    s_lshl_b32 s{S_AOFF}, s5, 10
    s_sub_u32 s6, s5, 128
    s_cmp_lt_u32 s{S_KS}, 2
    s_cselect_b32 s6, s5, s6
    s_mul_i32 s{S_WOFF}, s6, {32*896}
    s_cselect_b32 s{SRD_W}, s{SRD_WO}, s{SRD_WD}
    s_cselect_b32 s{SRD_W+1}, s{SRD_WO+1}, s{SRD_WD+1}
    s_cselect_b32 s{SRD_W+2}, s{SRD_WO+2}, s{SRD_WD+2}
    s_mov_b32 s{SRD_W+3}, 0x20000
    s_mov_b32 s{S_LDST}, 0
    s_lshl_b32 s{S_M0}, s{S_W}, 10
    """)
    a(f"""
    v_lshlrev_b32 v{V_L16}, 4, v{L}
    s_lshl_b32 s4, s{S_QT}, 3
    s_lshl_b32 s5, s{S_W}, 1
    s_add_u32 s4, s4, s5
    s_mul_i32 s4, s4, {184*1024}
    s_add_u32 s4, s4, {WS_ACT}
    v_add_u32 v{V_T}, s4, v{V_L16}
    v_add_u32 v{V_T+1}, {184*1024}, v{V_T}
    """)
    for j in range(4):
        a(f"""
        s_lshl_b32 s4, s{S_W}, 10
        s_add_u32 s4, s4, {4096*j}
        v_add_u32 v12, s4, v{V_L16}
        s_mov_b32 s5, {(1 << 32) // 224 + 1}
        v_mul_hi_u32 v13, v12, s5
        v_mul_u32_u24 v14, 224, v13
        v_sub_u32 v14, v12, v14
        v_mul_u32_u24 v13, 896, v13
        s_mul_i32 s5, s{S_MQ}, 224
        v_add3_u32 v{V_DW+j}, v13, v14, s5
        v_cmp_gt_u32 vcc, {SLOT}, v12
        v_mov_b32 v13, 0x7fffffff
        s_nop 0
        v_cndmask_b32 v{V_DW+j}, v13, v{V_DW+j}, vcc
        """)
    a(f"""
    v_lshrrev_b32 v12, 2, v{L}
    v_mul_u32_u24 v12, 224, v12
    v_and_b32 v13, 3, v{L}
    v_lshl_add_u32 v{V_RW}, v13, 3, v12
    v_add_u32 v{V_RW2}, 0x10000, v{V_RW}
    """)
    a(f"""
    s_lshl_b32 s4, s{S_QT}, 7
    s_lshl_b32 s5, s{S_W}, 5
    s_add_u32 s4, s4, s5
    v_and_b32 v12, 15, v{L}
    v_add_u32 v12, s4, v12
    v_lshlrev_b32 v12, 2, v12
    s_mov_b32 s4, {WS_G}
    buffer_load_dword v{V_G}, v12, {sr(SRD_WS,4)}, s4 offen
    buffer_load_dword v{V_G+1}, v12, {sr(SRD_WS,4)}, s4 offen offset:64
    """)
    PRE = NSLOT - 1
    def emit_w(W):
        for ins in W:
            if ins.startswith("s_add_u32 m0, s"):
                a(ins); a("s_nop 0")
            elif ins.startswith("s_add"):
                p0, p1 = ins.split("\n"); a(p0); a("s_nop 0"); a(p1)
            else:
                a(ins)
    for s in range(PRE):
        W, A = load_stage(s, 2*s)
        emit_w(W)
        for ins in A: a(ins)
        a(advance())
    for r in range(56): a(f"v_mov_b32 v{V_ACC+r}, 0")
    a(f"s_waitcnt vmcnt({8*(PRE-1)})")
    a(f"v_sub_f32 v{V_G}, 1.0, v{V_G}\nv_sub_f32 v{V_G+1}, 1.0, v{V_G+1}")
    a("s_barrier")
    for ins, _ in w_reads(0, 0, 0): a(ins)
    stamp(a, opts, 1, 15)
    if opts.get('prof'):
        for ins, _ in w_reads(0, 0, 0): a(ins)
    a(f"s_mov_b32 s{S_SC}, 0")
    a.label("K3_LOOP")
    for s in range(NSLOT):
        nx = (s + 1) % NSLOT
        ld = (s + PRE) % NSLOT
        ms = []
        for p in range(2):
            for i in range(7):
                for qb in range(2):
                    ms.append((f"{MF} {vr(acc(i,qb),4)}, {vr(wf(p,i),4)}, {vr(af(2*s+p,qb),4)}, {vr(acc(i,qb),4)}", [(p, i, 0), (p, i, 1)]))
        sc = Sched(ms, 2)
        for k, (ins, meta) in enumerate(w_reads(1, s, 1)):
            sc.put(k * 12 // 14, ins, 1, meta, force=True)
        sc.put(13, f"s_waitcnt vmcnt({8*(PRE-2)}) lgkmcnt(0)", 1, ('drain',), force=True)
        sc.put(13, "s_barrier", 1, None, force=True)
        for k, (ins, meta) in enumerate(w_reads(0, nx, 0)):
            sc.put(14 + k * 10 // 14, ins, 1, meta, force=True)
        W, A = load_stage(ld, 2*ld)
        slot = 14
        for ins in W:
            if "\n" in ins:
                p0, p1 = ins.split("\n")
                sc.put(slot, p0, 1, None, force=True); slot += 1
                sc.put(slot, p1, 1, None, force=True)
            elif ins.startswith("s_add"):
                sc.put(slot, ins, 1, None, force=True); slot += 1
            else:
                sc.put(slot, ins, 1, None, force=True)
            slot += 1
        for k, ins in enumerate(A):
            sc.put(min(27, slot + k), ins, 1, None, force=True)
        sc.put(27, advance(), 1, None, force=True)
        carried = [(0, i, r2) for i in range(7) for r2 in range(2)]
        body, out, nw = insert_lgkm_waits(sc.flat(), carried, 3)
        assert out == carried, out
        for ins in body: a(ins)
        a(f"""
        s_add_u32 s{S_SC}, s{S_SC}, 1
        s_cmp_lg_u32 s{S_SC}, s{S_N1}
        s_cbranch_scc1 K3_NOSC{s}
        s_nop 7
        """)
        for i in range(7):
            for qb in range(2):
                for r in range(4):
                    a(f"v_mul_f32 v{acc(i,qb)+r}, v{acc(i,qb)+r}, v{V_G+qb}")
        a("s_nop 1")
        a.label(f"K3_NOSC{s}")
        a(f"s_cmp_eq_u32 s{S_SC}, 23\ns_cbranch_scc1 K3_RED")
    a("s_branch K3_LOOP")
    a.label("K3_RED")
    stamp(a, opts, 2, 15)
    a(f"""
    s_waitcnt vmcnt(0) lgkmcnt(0)
    s_nop 7
    s_lshl_b32 s4, s{S_QT}, 2
    s_add_u32 s4, s4, s{S_MQ}
    s_lshl_b32 s5, s4, 2
    s_add_u32 s6, s5, s{S_KS}
    s_lshl_b32 s6, s6, 2
    s_add_u32 s6, s6, s{S_W}
    s_mul_i32 s6, s6, {SLOT}
    s_add_u32 s6, s6, {WS_P3}
    """)
    for t in range(14):
        if t and t % 4 == 0:
            a("s_add_u32 s6, s6, 4096")
        a(f"buffer_store_dwordx4 {vr(V_ACC+4*t,4)}, v{V_L16}, {sr(SRD_WS,4)}, s6 offen offset:{(t%4)*1024} sc1")
    a(f"""
    s_waitcnt vmcnt(0)
    s_barrier
    s_lshl_b32 s7, s4, 2
    v_mov_b32 v12, s7
    s_cmp_lg_u32 s{S_W}, 0
    s_cbranch_scc1 K3_NOFLAG
    v_mov_b32 v13, 1
    v_cmp_eq_u32 vcc, 0, v{L}
    s_and_saveexec_b64 s[44:45], vcc
    buffer_atomic_add v13, v12, {sr(SRD_DBG,4)}, 0 offen
    s_mov_b64 exec, s[44:45]
    """)
    a.label("K3_NOFLAG")
    a("s_mov_b32 s7, 0x40000")
    a.label("K3_POLL")
    a(f"""
    buffer_load_dword v13, v12, {sr(SRD_DBG,4)}, 0 offen sc1
    s_waitcnt vmcnt(0)
    v_readfirstlane_b32 s6, v13
    s_nop 3
    s_cmp_ge_u32 s6, 4
    s_cbranch_scc1 K3_POLLED
    s_sleep 2
    s_sub_u32 s7, s7, 1
    s_cmp_lg_u32 s7, 0
    s_cbranch_scc1 K3_POLL
    """)
    a.label("K3_POLLED")
    a(f"""
    s_lshl_b32 s5, s4, 4
    s_add_u32 s5, s5, s{S_KS}
    s_mul_i32 s5, s5, {SLOT}
    s_add_u32 s5, s5, {WS_P3}
    s_lshl_b32 s6, s{S_W}, 11
    s_add_u32 s5, s5, s6
    s_lshl_b32 s6, s{S_QT}, 7
    s_lshl_b32 s7, s{S_KS}, 5
    s_add_u32 s6, s6, s7
    v_and_b32 v12, 15, v{L}
    v_bfe_u32 v13, v{L}, 4, 1
    v_lshl_add_u32 v12, v13, 4, v12
    v_add_u32 v12, s6, v12
    v_mul_u32_u24 v12, 896, v12
    v_lshrrev_b32 v13, 5, v{L}
    v_lshl_add_u32 v12, v13, 4, v12
    s_mul_i32 s6, s{S_MQ}, 224
    s_lshl_b32 s7, s{S_W}, 5
    s_add_u32 s6, s6, s7
    v_add_u32 v12, s6, v12
    """)
    for it in range(2):
        if it == 1:
            a(f"s_cmp_eq_u32 s{S_W}, 3\ns_cbranch_scc1 K3_DONE")
        B = 96
        for sp in range(4):
            a(f"s_add_u32 s6, s5, {sp*4*SLOT + it*8192}")
            for qb in range(2):
                a(f"buffer_load_dwordx4 {vr(B+8*sp+4*qb,4)}, v{V_L16}, {sr(SRD_WS,4)}, s6 offen offset:{qb*1024} sc1")
        a("s_waitcnt vmcnt(0)")
        for r in range(8):
            a(f"v_add_f32 v{B+r}, v{B+r}, v{B+8+r}")
            a(f"v_add_f32 v{B+16+r}, v{B+16+r}, v{B+24+r}")
        for r in range(8):
            a(f"v_add_f32 v{B+r}, v{B+r}, v{B+16+r}")
        a(f"""
        v_cvt_pk_bf16_f32 v{B+32}, v{B}, v{B+1}
        v_cvt_pk_bf16_f32 v{B+33}, v{B+2}, v{B+3}
        v_cvt_pk_bf16_f32 v{B+34}, v{B+4}, v{B+5}
        v_cvt_pk_bf16_f32 v{B+35}, v{B+6}, v{B+7}
        s_nop 1
        v_permlane16_swap_b32 v{B+32}, v{B+34}
        v_permlane16_swap_b32 v{B+33}, v{B+35}
        buffer_store_dwordx4 {vr(B+32,4)}, v12, {sr(SRD_OUT,4)}, 0 offen offset:{it*128}
        """)
    a.label("K3_DONE")
    prof_end(a, opts, SRD_WS, 2, 15, 20)
    a.label("K3_END")
    a("s_endpgm")
    return name, kernel_desc(name, 256, 102, 256)
```

```python
class Sched:
    def __init__(self, mfmas, cap=2):
        self.m = mfmas
        self.cap = [cap] * len(mfmas)
        self.g = [[] for _ in mfmas]
        self.pre = []
    def put(self, slot, ins, cost=1, meta=None, force=False):
        n = len(self.m)
        s = max(slot, 0)
        if not force:
            while s < n and self.cap[s] < cost:
                s += 1
            assert s < n, f"no room for {ins} from slot {slot}"
        self.cap[s] -= cost
        self.g[s].append((ins, meta))
        return s
    def flat(self):
        out = list(self.pre)
        for i, (ins, needs) in enumerate(self.m):
            out.append((ins, ('mfma', i, needs)))
            out += self.g[i]
        return out

def insert_lgkm_waits(body, carried, slack):
    q = [(t, -10**6) for t in carried]
    out = []
    cur = 0
    nwait = 0
    for ins, meta in body:
        if meta and meta[0] == 'mfma':
            cur = meta[1]
            need = [t for t in meta[2] if any(t == x for x, _ in q)]
            if need:
                last = max(i for i, (x, _) in enumerate(q) if x in need)
                while last + 1 < len(q) and q[last + 1][1] <= cur - slack:
                    last += 1
                n = len(q) - 1 - last
                assert n <= 15, "lgkmcnt overflow"
                out.append(f"s_waitcnt lgkmcnt({n})")
                nwait += 1
                q = q[last + 1:]
            out.append(ins)
        elif meta and meta[0] == 'rd':
            q.append((meta[1], cur))
            assert len(q) <= 15 or True
            out.append(ins)
        elif meta and meta[0] == 'drain':
            q = []
            out.append(ins)
        else:
            out.append(ins)
    return out, [t for t, _ in q], nwait
```

```python
import sys
from asmlib import *
import gen_k1

HEADER = open('gated_mix__compressed_kv_cla__geglu_ffn__prompt.s.ref').read().split("; Override launch")[0]

def build(opts, kernels=("k1",)):
    a = Asm()
    descs, launches = [], []
    if "k1" in kernels:
        n, d = gen_k1.gen_k1(a, opts); descs.append(d)
        launches.append(f"; @launch kernel={n} grid=(256,1,1) block=(256,1,1) lds=131072")
    if "k2" in kernels:
        import gen_k2
        n, d = gen_k2.gen_k2(a, opts); descs.append(d)
        launches.append(f"; @launch kernel={n} grid=(256,1,1) block=(256,1,1) lds={gen_k2.LDS}")
    if "k3" in kernels:
        import gen_k3
        n, d = gen_k3.gen_k3(a, opts); descs.append(d)
        launches.append(f"; @launch kernel={n} grid=({gen_k3.GRID},1,1) block=(256,1,1) lds={gen_k3.LDS}")
    txt = HEADER + "\n".join(launches) + "\n"
    txt += '.amdgcn_target "amdgcn-amd-amdhsa--gfx950"\n.text\n' + a.text()
    txt += '.section .rodata,"a"\n' + "".join(".p2align 6\n" + d + "\n" for d in descs)
    return txt

DEFAULT = dict(thresh=12.0, kslack=6, npre=8, klead=16, e0_step=3, e1_start=52, e1_step=2, v_start=50, v_end=108, bar=112, dmacost=2, dmagap=1, rstride=2, dma_slots=list(range(2, 66, 4)))

if __name__ == "__main__":
    opts = dict(DEFAULT)
    out = sys.argv[1]
    ks = sys.argv[2].split(",")
    for kv in sys.argv[3:]:
        k, v = kv.split("=")
        opts[k] = eval(v)
    open(out, "w").write(build(opts, ks))
```

```python
class Asm:
    def __init__(self):
        self.L = []
    def __call__(self, s):
        for ln in s.split("\n"):
            ln = ln.strip()
            if ln:
                self.L.append("    " + ln)
    def label(self, n):
        self.L.append(n + ":")
    def raw(self, s):
        self.L.append(s)
    def text(self):
        return "\n".join(self.L) + "\n"

def vr(b, n=1):
    return f"v{b}" if n == 1 else f"v[{b}:{b+n-1}]"
def ar(b, n=1):
    return f"a{b}" if n == 1 else f"a[{b}:{b+n-1}]"
def sr(b, n=1):
    return f"s{b}" if n == 1 else f"s[{b}:{b+n-1}]"

def interleave(mfmas, fillers):
    out = []
    out += fillers.get(-1, [])
    for i, m in enumerate(mfmas):
        out.append(m)
        out += fillers.get(i, [])
    return out

def kernel_header(name):
    return f".globl {name}\n.p2align 8\n.type {name},@function\n{name}:"

def kernel_desc(name, vgpr, sgpr, accum):
    return f""".amdhsa_kernel {name}
  .amdhsa_next_free_vgpr {vgpr}
  .amdhsa_next_free_sgpr {sgpr}
  .amdhsa_accum_offset {accum}
  .amdhsa_group_segment_fixed_size 0
  .amdhsa_kernarg_size 112
  .amdhsa_user_sgpr_count 2
  .amdhsa_user_sgpr_kernarg_segment_ptr 1
  .amdhsa_system_sgpr_workgroup_id_x 1
.end_amdhsa_kernel"""

A_X, A_CKV, A_WQ, A_WUK, A_WUV, A_WO, A_BX, A_WG, A_WU, A_WD, A_GW, A_OUT, A_DBG, A_WS = [8*i for i in range(14)]

MB = 1 << 20
WS_Q   = 0
WS_K   = 16 * MB
WS_V   = 32 * MB
WS_ACT = 48 * MB
WS_G   = 72 * MB
WS_PO  = 80 * MB
WS_PS  = 90 * MB
WS_P3  = 96 * MB
WS_PROF = 200 * MB
WS_SIZE = 256 * MB


def stamp(a, opts, idx, vprof=127):
    if not opts.get('prof'):
        return
    a(f"""
    s_memtime s[94:95]
    s_memrealtime s[96:97]
    s_waitcnt lgkmcnt(0)
    v_writelane_b32 v{vprof}, s94, {2*idx}
    v_writelane_b32 v{vprof}, s96, {2*idx+1}
    """)

def prof_end(a, opts, s_ws, kidx, vprof=127, vt=32):
    if not opts.get('prof'):
        return
    a("s_waitcnt vmcnt(0)")
    stamp(a, opts, 7, vprof)
    a(f"""
    s_lshl_b32 s94, s2, 2
    s_add_u32 s94, s94, s3
    s_lshl_b32 s94, s94, 8
    s_add_u32 s94, s94, {WS_PROF + kidx*(1<<20)}
    v_mbcnt_lo_u32_b32 v{vt}, -1, 0
    v_mbcnt_hi_u32_b32 v{vt}, -1, v{vt}
    v_lshlrev_b32 v{vt+1}, 2, v{vt}
    v_cmp_gt_u32 vcc, 64, v{vt}
    s_and_saveexec_b64 s[96:97], vcc
    buffer_store_dword v{vprof}, v{vt+1}, {sr(s_ws,4)}, s94 offen
    s_mov_b64 exec, s[96:97]
    """)


_cp = [0]
def code_prefetch(a, start, end, nbytes_max, s_tmp, v_tmp, v_tid, v_dummy, nthreads=256):
    _cp[0] += 1
    here = f"CPF_{_cp[0]}"
    a(f"s_getpc_b64 s[{s_tmp}:{s_tmp+1}]")
    a.label(here)
    if start is None:
        start = here
    else:
        a(f"s_add_u32 s{s_tmp}, s{s_tmp}, {start}-{here}")
        a(f"s_addc_u32 s{s_tmp+1}, s{s_tmp+1}, 0")
    n = -(-nbytes_max // (128 * nthreads))
    a(f"v_lshlrev_b32 v{v_tmp}, 7, v{v_tid}")
    for k in range(n):
        a(f"v_min_u32 v{v_tmp+1}, {end}-{start}-4, v{v_tmp}")
        a(f"global_load_dword v{v_dummy}, v{v_tmp+1}, s[{s_tmp}:{s_tmp+1}]")
        if k + 1 < n:
            a(f"v_add_u32 v{v_tmp}, {128*nthreads}, v{v_tmp}")
    return n
```

```python
from asmlib import *
import math, struct

OPTS = {}
S_W = 3
P = {1: dict(act=8, wgt=12, soffA=32, soffW=40, strideW=65, vDA0=4, vDA1=5, vDW0=6, vDW1=7, vW=16),
     2: dict(act=16, wgt=20, soffA=48, soffW=56, strideW=66, vDA0=8, vDA1=9, vDW0=10, vDW1=11, vW=24)}
S_WS = 24
S_M0 = 64
S_CNT = 67
S_ISV = 68
S_KIND = 69
S_OB1 = 70
S_OB2 = 71
V_LANE = 1
V_L16 = 2
V_A = 12
FR = [128, 192]
V_T = 32
V_PA, V_PW, V_PD = 14, 15, 3
V_PA2, V_PW2 = 124, 125

def f2h(f): return "0x%08x" % struct.unpack("<I", struct.pack("<f", f))[0]
def act_frag(st, j): return FR[st] + 4*j
def wgt_frag(st, i): return FR[st] + 32 + 4*i

def reads(st, par, ks, prod):
    vW = P[prod]['vW']
    out = []
    for i in range(8):
        out.append(f"ds_read_b128 {vr(act_frag(st,i),4)}, v{V_A+ks} offset:{par*32768 + i*2048}")
        for r2 in range(2):
            out.append(f"ds_read_b64_tr_b16 {vr(wgt_frag(st,i)+2*r2,2)}, v{vW+i} offset:{par*32768 + ks*8192 + r2*1024}")
    return out

def mfmas(st, order, init):
    out = []
    for i in range(8):
        for j in range(8):
            acc = ar(4*(8*i + j), 4)
            w, x = vr(wgt_frag(st,i),4), vr(act_frag(st,j),4)
            A, B = (w, x) if order == 'WA' else (x, w)
            out.append(f"v_mfma_f32_16x16x32_bf16 {acc}, {A}, {B}, {'0' if init else acc}")
    return out

def dma_list(prod, par):
    p = P[prod]
    L = []
    for g in range(2):
        L.append(f"s_add_u32 m0, s{S_M0}, {par*32768 + g*4096}")
        for jj in range(4):
            j = 4*g + jj
            v = p['vDA0'] if j % 2 == 0 else p['vDA1']
            L.append(f"buffer_load_dwordx4 v{v}, {sr(p['act'],4)}, s{p['soffA']+j} offen offset:{jj*1024} {OPTS.get('nt_a','')} lds")
    for g in range(2):
        L.append(f"s_add_u32 m0, s{S_M0}, {65536 + par*32768 + g*4096}")
        for jj in range(4):
            j = 4*g + jj
            v = p['vDW0'] if (j & 2) == 0 else p['vDW1']
            L.append(f"buffer_load_dwordx4 v{v}, {sr(p['wgt'],4)}, s{p['soffW']+j} offen offset:{jj*1024} {OPTS.get('nt_w','')} lds")
    adv = [f"v_add_u32 v{p['vDA0']}, 128, v{p['vDA0']}",
           f"v_add_u32 v{p['vDA1']}, 128, v{p['vDA1']}",
           f"v_add_u32 v{p['vDW0']}, s{p['strideW']}, v{p['vDW0']}",
           f"v_add_u32 v{p['vDW1']}, s{p['strideW']}, v{p['vDW1']}"]
    return L, adv

def place_dma(fill, prod, par, slots):
    L, adv = dma_list(prod, par)
    si = 0
    for ins in L:
        if ins.startswith("s_add"):
            s = slots[si] - 1
            fill.setdefault(s, []).append(ins)
            if s < 0: fill[s].append("s_nop 0")
        else:
            fill.setdefault(slots[si], []).append(ins); si += 1
    for k, ins in enumerate(adv):
        fill.setdefault(slots[-1] + 1 + k, []).append(ins)

def kstep(fill, ms, use_set, order, init, rd, opts):
    base = len(ms)
    ms += mfmas(use_set, order, init)
    fill.setdefault(base - 1, []).append("s_waitcnt lgkmcnt(0)")
    if rd is not None:
        for k, ins in enumerate(reads(*rd)):
            fill.setdefault(base + 1 + k*opts['rstride'], []).append(ins)

def emit(a, ms, fill):
    for ins in interleave(ms, fill):
        a(ins)

def sync(a, n=0):
    a(f"s_waitcnt vmcnt({n}) lgkmcnt(0)")
    a("s_barrier")

def pf_ops(prod=1):
    p = P[prod]
    return [f"buffer_load_dword v{V_PD}, v{V_PA}, {sr(p['act'],4)}, 0 offen {OPTS.get('nt_pa','')}",
            f"buffer_load_dword v{V_PD}, v{V_PW}, {sr(p['wgt'],4)}, 0 offen {OPTS.get('nt_pw','')}",
            f"v_add_u32 v{V_PA}, 128, v{V_PA}",
            f"v_add_u32 v{V_PW}, s{p['strideW']}, v{V_PW}"]

def pre_body(a, order, wprod, opts, nwait=0, extra=(), bulk=False):
    ms, fill = [], {}
    if bulk:
        nwait += bulk_pf(a, bulk)
    kstep(fill, ms, 0, order, True, (1, 0, 1, wprod), opts)
    nst = place_stores(fill, extra, 8, 10)
    emit(a, ms, fill); sync(a, nwait + nst)

NDEF = 23
S_ODD = 75
def def_reg(n): return V_T + 4*n
def def_store(n, reg=None):
    q = n >> 2
    sc = f"s_add_u32 s72, s{S_OB1}, {(q>>1)*16384}"
    if q & 1:
        sc += f"\ns_add_u32 s72, s72, s{S_ODD}"
    return sc, f"buffer_store_dwordx4 {vr(def_reg(n) if reg is None else reg,4)}, v{V_L16}, {sr(S_WS,4)}, s72 offen offset:{(n&3)*1024}"

def place_stores(fill, ns, s0, step):
    for k, n in enumerate(ns):
        sc, st = def_store(n)
        fill.setdefault(s0 + k*step, []).append(sc)
        fill.setdefault(s0 + k*step + 1, []).append(st)
    return len(ns)

def epi_tile1(a, kind):
    a("s_nop 7")
    TMP = FR[1]
    for n in list(range(NDEF, 32)) + list(range(NDEF)):
        q, r = n >> 2, n & 3
        if kind == 'K':
            t0, t1 = 8*(2*r) + q, 8*(2*r+1) + q
        else:
            i, p = 4*(q & 1) + r, q >> 1
            t0, t1 = 8*i + 2*p, 8*i + 2*p + 1
        T = TMP + 12*(n % 5)
        rd_acc(a, T, t0); rd_acc(a, T + 4, t1)
        D = def_reg(n) if n < NDEF else T + 8
        for k in range(4):
            a(f"v_cvt_pk_bf16_f32 v{D+k}, v{T+2*k}, v{T+2*k+1}")
        if n >= NDEF:
            sc, st = def_store(n, D)
            a(sc); a(st)


def body(a, par, order, wprod, dma, opts, pf=0, extra=(), final=False):
    ms, fill = [], {}
    n = 1 - par
    kstep(fill, ms, 1, order, False, (0, n, 0, wprod), opts)
    kstep(fill, ms, 0, order, False, (1, n, 1, wprod), opts)
    if dma is not None:
        place_dma(fill, dma, par, opts['dma_slots'])
    s0 = opts['dma_slots'][-1] + 6
    if pf:
        for k, ins in enumerate(pf_ops(pf)):
            fill.setdefault(s0 + 2*k, []).append(ins)
    nst = place_stores(fill, extra, s0 + 10, 8)
    emit(a, ms, fill)
    if final:
        a("s_waitcnt lgkmcnt(0)")
    else:
        sync(a, (2 if pf else 0) + nst)

def post_body(a, par, order, wprod_next, dma, opts, pf=0):
    ms, fill = [], {}
    kstep(fill, ms, 1, order, False, None if wprod_next is None else (0, 1 - par, 0, wprod_next), opts)
    if dma is not None:
        place_dma(fill, dma, par, list(range(2, 50, 3)))
    if pf:
        for k, ins in enumerate(pf_ops(pf)):
            fill.setdefault(54 + 2*k, []).append(ins)
    emit(a, ms, fill)

def bulk_pf(a, parts):
    a(f"""
    s_lshl_b32 s92, s2, 2
    s_add_u32 s92, s92, s{S_W}
    s_mov_b32 s31, 0x20000
    """)
    def one(lo, hi, nbytes, lanes, widx):
        a(f"""
        s_mov_b32 s28, s{lo}
        s_mov_b32 s29, s{hi}
        s_mov_b32 s30, {nbytes}
        s_mul_i32 s93, {widx}, {lanes*128}
        v_lshlrev_b32 v{V_T}, 7, v{V_LANE}
        v_add_u32 v{V_T}, s93, v{V_T}
        v_cmp_gt_u32 vcc, {lanes}, v{V_LANE}
        v_mov_b32 v{V_T+1}, 0x7f000000
        s_nop 0
        v_cndmask_b32 v{V_T}, v{V_T+1}, v{V_T}, vcc
        buffer_load_dword v{V_PD}, v{V_T}, s[28:31], 0 offen
        """)
    n = 0
    if 'a' not in parts:
        one(98, 99, 4096*896, 28, "s92")
        one(100, 101, 1792*896, 13, "s92")
        return 2
    one(16, 17, 2048*896, 14, "s92")
    one(76, 77, 448*8192, 28, "s92")
    a("""
    s_and_b32 s93, s92, 1
    s_cmp_eq_u32 s93, 0
    s_cselect_b32 s4, s84, s86
    s_cselect_b32 s5, s85, s87
    s_lshr_b32 s6, s92, 1
    """)
    one(4, 5, 448*3584, 25, "s6")
    if 'b' not in parts:
        return 3
    one(98, 99, 4096*896, 28, "s92")
    one(100, 101, 1792*896, 13, "s92")
    return 5

def rd_acc(a, dst, t):
    for r in range(4):
        a(f"v_accvgpr_read_b32 v{dst+r}, a{4*t+r}")

def epi_plain(a, kind):
    sob = S_OB2 if kind == 'Q' else S_OB1
    a("s_nop 7")
    n = 0
    if kind == 'Q':
        a(f"s_mov_b32 s73, {f2h(math.log2(math.e) / 16.0)}")
    for o in range(8):
        for p in range(4):
            T = V_T + 12*(n % 6); n += 1
            t0, t1 = (8*(2*p) + o, 8*(2*p+1) + o) if kind != 'V' else (8*o + 2*p, 8*o + 2*p + 1)
            rd_acc(a, T, t0); rd_acc(a, T + 4, t1)
            if kind == 'Q':
                for r in range(8):
                    a(f"v_mul_f32 v{T+r}, s73, v{T+r}")
            for r in range(4):
                a(f"v_cvt_pk_bf16_f32 v{T+8+r}, v{T+2*r}, v{T+2*r+1}")
            if kind == 'V':
                if o % 4 == 0:
                    pass
                a(f"s_add_u32 s72, s{sob}, {p*16384 + (o>>2)*4096}")
                a(f"buffer_store_dwordx4 {vr(T+8,4)}, v{V_L16}, {sr(S_WS,4)}, s72 offen offset:{(o&3)*1024}")
            else:
                if p == 0:
                    a(f"s_add_u32 s72, s{sob}, {o*8192}")
                a(f"buffer_store_dwordx4 {vr(T+8,4)}, v{V_L16}, {sr(S_WS,4)}, s72 offen offset:{p*1024}")

def epi_ffn(a):
    c0 = -2.0 * math.log2(math.e) * math.sqrt(2.0 / math.pi)
    c1 = c0 * 0.044715
    VC0, VC1, VONE = 120, 122, 124
    for r in range(2):
        a(f"v_mov_b32 v{VC0+r}, {f2h(c0)}")
        a(f"v_mov_b32 v{VC1+r}, {f2h(c1)}")
        a(f"v_mov_b32 v{VONE+r}, 1.0")
    a("s_nop 7")
    n = 0
    for j in range(8):
        for p in range(2):
            T = V_T + 28*(n % 3); n += 1
            G, U, X, O = T, T + 8, T + 16, T + 24
            for h in range(2):
                i = 2*p + h
                rd_acc(a, G + 4*h, 8*i + j)
                rd_acc(a, U + 4*h, 8*(i + 4) + j)
            pk = lambda op, d, x, y, z=None: a(f"v_pk_{op}_f32 {vr(d,2)}, {x}, {y}" + (f", {z}" if z else ""))
            for r in range(0, 8, 2): pk("mul", X+r, vr(G+r,2), vr(G+r,2))
            for r in range(0, 8, 2): pk("fma", X+r, vr(X+r,2), vr(VC1,2), vr(VC0,2))
            for r in range(0, 8, 2): pk("mul", X+r, vr(X+r,2), vr(G+r,2))
            for r in range(8): a(f"v_exp_f32 v{X+r}, v{X+r}")
            for r in range(0, 8, 2): pk("mul", G+r, vr(G+r,2), vr(U+r,2))
            for r in range(0, 8, 2): pk("add", X+r, vr(X+r,2), vr(VONE,2))
            for r in range(8): a(f"v_rcp_f32 v{X+r}, v{X+r}")
            a("s_nop 0")
            for r in range(0, 8, 2): pk("mul", G+r, vr(G+r,2), vr(X+r,2))
            for r in range(4): a(f"v_cvt_pk_bf16_f32 v{O+r}, v{G+2*r}, v{G+2*r+1}")
            if p == 0:
                a(f"s_add_u32 s72, s{S_OB2}, {j*184*1024}")
            a(f"buffer_store_dwordx4 {vr(O,4)}, v{V_L16}, {sr(S_WS,4)}, s72 offen offset:{p*1024}")

def gate_tile(a):
    a(f"""
    s_waitcnt vmcnt(0)
    s_mov_b32 s12, s88
    s_mov_b32 s13, s89
    s_mov_b32 s14, 896
    s_mov_b32 s15, 0x20000
    s_lshl_b32 s74, s82, 7
    s_lshl_b32 s75, s{S_W}, 5
    s_add_u32 s74, s74, s75
    v_and_b32 v32, 31, v{V_LANE}
    v_add_u32 v32, s74, v32
    v_lshrrev_b32 v33, 5, v{V_LANE}
    v_lshlrev_b32 v33, 4, v33
    s_movk_i32 s75, 896
    v_mul_lo_u32 v34, v32, s75
    v_add_u32 v34, v34, v33
    v_mov_b32 v35, 0
    """)
    for t in range(28):
        b = 40 + 8*(t % 4)
        a(f"buffer_load_dwordx4 {vr(b,4)}, v34, s[16:19], 0 offen offset:{t*32}")
        a(f"buffer_load_dwordx4 {vr(b+4,4)}, v33, s[12:15], 0 offen offset:{t*32}")
        if t % 4 == 3:
            a("s_waitcnt vmcnt(0)")
            for tt in range(4):
                bb = 40 + 8*tt
                for r in range(4):
                    a(f"v_dot2_f32_bf16 v35, v{bb+r}, v{bb+4+r}, v35")
    a(f"""
    s_nop 3
    v_mov_b32 v36, v35
    s_nop 1
    v_permlane32_swap_b32 v35, v36
    s_nop 1
    v_add_f32 v35, v35, v36
    v_mul_f32 v35, 0xbfb8aa3b, v35
    v_exp_f32 v35, v35
    s_nop 0
    v_add_f32 v35, 1.0, v35
    v_rcp_f32 v35, v35
    v_lshlrev_b32 v32, 2, v32
    v_add_u32 v32, {WS_G}, v32
    v_cmp_gt_u32 vcc, 32, v{V_LANE}
    s_and_saveexec_b64 s[76:77], vcc
    buffer_store_dword v35, v32, {sr(S_WS,4)}, 0 offen
    s_mov_b64 exec, s[76:77]
    """)

def gen_k1(a, opts):
    OPTS.clear(); OPTS.update(opts)
    name = "k1_proj_kernel"
    L = V_LANE
    a.raw(kernel_header(name))
    a("s_cmp_ge_u32 s2, 256\ns_cbranch_scc1 K1_END")
    shuffle_id(a, opts)
    a(f"""
    s_load_dwordx2 s[72:73], s[0:1], 0
    s_load_dwordx2 s[74:75], s[0:1], 8
    s_load_dwordx2 s[76:77], s[0:1], 16
    s_load_dwordx2 s[78:79], s[0:1], 24
    s_load_dwordx2 s[80:81], s[0:1], 32
    s_load_dwordx2 s[84:85], s[0:1], 56
    s_load_dwordx2 s[86:87], s[0:1], 64
    s_load_dwordx2 s[88:89], s[0:1], 80
    s_load_dwordx2 s[90:91], s[0:1], 104
    s_load_dwordx2 s[98:99], s[0:1], 40
    s_load_dwordx2 s[100:101], s[0:1], 72
    v_lshrrev_b32 v3, 6, v0
    v_and_b32 v{L}, 63, v0
    s_nop 0
    v_readfirstlane_b32 s3, v3
    """)
    if opts.get('cpf', 1):
        code_prefetch(a, None, opts.get('last_label', 'K1_END'), opts.get('code_bytes', 96*1024), 92, 32, 0, V_PD)
    stamp(a, opts, 0)
    a(f"""
    s_and_b32 s4, s2, 7
    s_lshr_b32 s5, s2, 3
    s_and_b32 s6, s5, 3
    s_lshl_b32 s7, s4, 2
    s_add_u32 s6, s6, s7
    s_and_b32 s{S_ISV}, s6, 1
    s_lshr_b32 s6, s6, 1
    s_lshr_b32 s7, s5, 2
    s_lshl_b32 s{S_M0}, s3, 13
    s_waitcnt lgkmcnt(0)
    """)
    a(f"""
    s_mov_b32 s8, s74
    s_mov_b32 s9, s75
    s_mov_b32 s10, {2048*2048}
    s_mov_b32 s11, 0x20000
    s_cmp_eq_u32 s{S_ISV}, 0
    s_cselect_b32 s12, s78, s80
    s_cselect_b32 s13, s79, s81
    s_mov_b32 s14, {1024*8192}
    s_mov_b32 s15, 0x20000
    s_mov_b32 s16, s72
    s_mov_b32 s17, s73
    s_mov_b32 s18, {2048*896}
    s_mov_b32 s19, 0x20000
    s_mov_b32 s24, s90
    s_mov_b32 s25, s91
    s_mov_b32 s26, {WS_SIZE}
    s_mov_b32 s27, 0x20000
    s_cmp_ge_u32 s5, 16
    s_cselect_b32 s{S_KIND}, 1, 0
    s_cmp_ge_u32 s5, 30
    s_cselect_b32 s{S_KIND}, 2, s{S_KIND}
    s_cmp_ge_u32 s3, 2
    s_cselect_b32 s20, s86, s84
    s_cselect_b32 s21, s87, s85
    s_cmp_eq_u32 s{S_KIND}, 1
    s_cselect_b32 s20, s20, s76
    s_cselect_b32 s21, s21, s77
    s_movk_i32 s83, 8192
    s_cselect_b32 s83, 3584, s83
    s_mul_i32 s22, s83, 448
    s_mov_b32 s23, 0x20000
    """)
    for j in range(8):
        a(f"s_mov_b32 s{P[1]['soffA']+j}, {j*16384 - (j&3)*1024}")
        a(f"s_mov_b32 s{P[1]['soffW']+j}, {j*32768 - (j&3)*1024}")
        a(f"s_mov_b32 s{P[2]['soffA']+j}, {j*7168 - (j&3)*1024}")
        a(f"s_mul_i32 s{P[2]['soffW']+j}, s83, {4*j}")
        if j & 3:
            a(f"s_sub_u32 s{P[2]['soffW']+j}, s{P[2]['soffW']+j}, {(j&3)*1024}")
    a(f"""
    s_mov_b32 s{P[1]['strideW']}, {64*8192}
    s_lshl_b32 s{P[2]['strideW']}, s83, 6
    s_and_b32 s28, s5, 1
    s_lshl_b32 s29, s4, 1
    s_add_u32 s28, s28, s29
    s_lshr_b32 s29, s5, 1
    s_and_b32 s29, s29, 7
    s_sub_u32 s30, s5, 16
    s_cmp_ge_u32 s30, 7
    s_cselect_b32 s31, 1, 0
    s_mul_i32 s92, s31, 7
    s_sub_u32 s30, s30, s92
    s_and_b32 s92, s4, 1
    s_mul_i32 s92, s92, 7
    s_add_u32 s30, s30, s92
    s_and_b32 s92, s4, 6
    s_add_u32 s31, s31, s92
    s_cmp_eq_u32 s{S_KIND}, 1
    s_cselect_b32 s29, s31, s29
    """)
    a(f"""
    v_lshrrev_b32 v32, 3, v{L}
    v_lshrrev_b32 v33, 4, v{L}
    v_and_b32 v34, 7, v{L}
    v_xor_b32 v34, v34, v33
    v_lshlrev_b32 v34, 4, v34
    s_lshl_b32 s92, s3, 6
    s_lshl_b32 s93, s7, 8
    s_add_u32 s93, s93, s92
    v_add_u32 v35, s93, v32
    v_lshlrev_b32 v35, 11, v35
    v_add_u32 v{P[1]['vDA0']}, v35, v34
    v_xor_b32 v{P[1]['vDA1']}, 64, v{P[1]['vDA0']}
    s_lshl_b32 s93, s29, 8
    s_add_u32 s93, s93, s92
    v_add_u32 v35, s93, v32
    s_movk_i32 s93, 896
    v_mul_lo_u32 v35, v35, s93
    v_add_u32 v{P[2]['vDA0']}, v35, v34
    v_xor_b32 v{P[2]['vDA1']}, 64, v{P[2]['vDA0']}
    """)
    a(f"""
    v_bfe_u32 v36, v{L}, 1, 3
    v_xor_b32 v36, v36, v33
    v_lshlrev_b32 v36, 5, v36
    v_and_b32 v37, 1, v{L}
    v_lshl_add_u32 v36, v37, 4, v36
    v_xor_b32 v38, 128, v36
    s_and_b32 s92, s3, 1
    s_lshl_b32 s92, s92, 5
    v_add_u32 v37, s92, v33
    s_lshr_b32 s92, s3, 1
    s_lshl_b32 s93, s6, 9
    s_lshl_b32 s31, s92, 8
    s_add_u32 s93, s93, s31
    v_lshlrev_b32 v39, 13, v37
    v_add3_u32 v{P[1]['vDW0']}, v39, v36, s93
    v_add3_u32 v{P[1]['vDW1']}, v39, v38, s93
    s_lshl_b32 s93, s28, 9
    s_add_u32 s93, s93, s31
    s_lshl_b32 s31, s30, 8
    s_cmp_eq_u32 s{S_KIND}, 1
    s_cselect_b32 s93, s31, s93
    v_mul_lo_u32 v39, v37, s83
    v_add3_u32 v{P[2]['vDW0']}, v39, v36, s93
    v_add3_u32 v{P[2]['vDW1']}, v39, v38, s93
    """)
    a(f"""
    v_and_b32 v32, 15, v{L}
    v_lshrrev_b32 v34, 1, v32
    v_xor_b32 v34, v34, v33
    s_and_b32 s92, s3, 1
    s_lshl_b32 s92, s92, 7
    v_add_u32 v35, s92, v32
    v_lshlrev_b32 v35, 7, v35
    """)
    for s in range(2):
        a(f"v_xor_b32 v36, {4*s}, v34")
        a(f"v_lshl_add_u32 v{V_A+s}, v36, 4, v35")
    a(f"""
    v_bfe_u32 v34, v{L}, 2, 2
    v_lshlrev_b32 v35, 11, v33
    v_lshl_add_u32 v35, v34, 8, v35
    v_and_b32 v36, 3, v{L}
    v_lshl_add_u32 v35, v36, 3, v35
    v_add_u32 v35, 0x10000, v35
    v_and_b32 v36, 1, v33
    v_lshl_or_b32 v34, v36, 2, v34
    s_lshr_b32 s92, s3, 1
    s_lshl_b32 s93, s92, 14
    s_lshl_b32 s31, s92, 2
    s_cmp_eq_u32 s{S_KIND}, 1
    s_cselect_b64 vcc, -1, 0
    """)
    for i in range(8):
        a(f"v_xor_b32 v36, {i}, v34")
        a(f"v_lshl_add_u32 v36, v36, 5, v35")
        a(f"v_add_u32 v{P[1]['vW']+i}, s93, v36")
        a(f"s_add_u32 s94, s31, {i & 3}")
        a(f"v_xor_b32 v36, s94, v34")
        a(f"v_lshl_add_u32 v36, v36, 5, v35")
        a(f"v_add_u32 v36, {(i>>2)*16384}, v36")
        a(f"v_cndmask_b32 v{P[2]['vW']+i}, v{P[1]['vW']+i}, v36, vcc")
    a(f"v_lshlrev_b32 v{V_L16}, 4, v{L}")
    a(f"""
    s_and_b32 s92, s3, 1
    s_lshr_b32 s93, s3, 1
    s_lshl_b32 s4, s6, 7
    s_lshl_b32 s5, s7, 4
    s_add_u32 s4, s4, s5
    s_lshl_b32 s5, s92, 3
    s_add_u32 s4, s4, s5
    s_lshl_b32 s4, s4, 13
    s_lshl_b32 s5, s93, 12
    s_add_u32 s5, s4, s5
    s_add_u32 s5, s5, {WS_K}
    s_lshl_b32 s31, s93, 13
    s_add_u32 s4, s4, s31
    s_add_u32 s4, s4, {WS_V}
    s_cmp_eq_u32 s{S_ISV}, 0
    s_cselect_b32 s{S_OB1}, s5, s4
    s_lshl_b32 s4, s28, 7
    s_lshl_b32 s5, s29, 4
    s_lshl_b32 s31, s92, 3
    s_add_u32 s5, s5, s31
    s_add_u32 s4, s4, s5
    s_lshl_b32 s4, s4, 13
    s_lshl_b32 s6, s93, 12
    s_add_u32 s4, s4, s6
    s_add_u32 s4, s4, {WS_Q}
    s_mul_i32 s5, s5, 184
    s_lshl_b32 s6, s30, 2
    s_add_u32 s5, s5, s6
    s_lshl_b32 s6, s93, 1
    s_add_u32 s5, s5, s6
    s_add_u32 s5, s5, 128
    s_lshl_b32 s5, s5, 10
    s_add_u32 s5, s5, {WS_ACT}
    s_cmp_eq_u32 s{S_KIND}, 1
    s_cselect_b32 s{S_OB2}, s5, s4
    s_and_b32 s4, s2, 7
    s_lshr_b32 s5, s2, 3
    s_lshl_b32 s4, s4, 1
    s_add_u32 s4, s4, s5
    s_sub_u32 s82, s4, 30
    """)
    PFD = opts.get('pf_dist', 0)
    if PFD:
        a(f"""
        s_lshr_b32 s4, s2, 3
        s_and_b32 s5, s4, 3
        s_lshr_b32 s6, s4, 2
        s_lshl_b32 s7, s6, 8
        s_lshl_b32 s5, s5, 6
        s_add_u32 s7, s7, s5
        s_lshl_b32 s5, s3, 4
        s_add_u32 s7, s7, s5
        v_add_u32 v32, s7, v{L}
        v_lshlrev_b32 v32, 11, v32
        v_add_u32 v32, {2*128}, v32
        v_mov_b32 v33, 0x7f000000
        v_cmp_gt_u32 vcc, 16, v{L}
        s_nop 1
        v_cndmask_b32 v{V_PA}, v33, v32, vcc
        s_lshl_b32 s6, s6, 3
        s_lshl_b32 s5, s3, 1
        s_add_u32 s6, s6, s5
        s_add_u32 s6, s6, 128
        v_lshrrev_b32 v32, 2, v{L}
        v_add_u32 v32, s6, v32
        v_lshlrev_b32 v32, 13, v32
        v_and_b32 v34, 3, v{L}
        v_lshl_add_u32 v32, v34, 7, v32
        s_and_b32 s4, s2, 7
        s_lshr_b32 s5, s2, 3
        s_and_b32 s5, s5, 3
        s_lshl_b32 s4, s4, 2
        s_add_u32 s4, s4, s5
        s_lshr_b32 s4, s4, 1
        s_lshl_b32 s4, s4, 9
        v_add_u32 v32, s4, v32
        v_cmp_gt_u32 vcc, 8, v{L}
        s_nop 1
        v_cndmask_b32 v{V_PW}, v33, v32, vcc
        """)
    a(f"""
    s_cmp_eq_u32 s{S_ISV}, 0
    s_movk_i32 s{S_ODD}, 4096
    s_cselect_b32 s{S_ODD}, 8192, s{S_ODD}
    """)
    if PFD:
        a(f"""
        s_lshr_b32 s4, s2, 3
        s_and_b32 s4, s4, 1
        s_lshl_b32 s4, s4, 7
        s_lshl_b32 s5, s29, 8
        s_add_u32 s4, s4, s5
        s_lshl_b32 s5, s3, 5
        s_add_u32 s4, s4, s5
        v_add_u32 v32, s4, v{L}
        s_movk_i32 s4, 896
        v_mul_lo_u32 v32, v32, s4
        v_cmp_gt_u32 vcc, 32, v{L}
        s_nop 1
        v_cndmask_b32 v{V_PA2}, v33, v32, vcc
        s_lshl_b32 s4, s29, 3
        s_lshl_b32 s5, s3, 1
        s_add_u32 s4, s4, s5
        v_lshrrev_b32 v32, 2, v{L}
        v_add_u32 v32, s4, v32
        v_lshlrev_b32 v32, 13, v32
        v_and_b32 v34, 3, v{L}
        v_lshl_add_u32 v32, v34, 7, v32
        s_lshl_b32 s4, s28, 9
        v_add_u32 v32, s4, v32
        v_cmp_gt_u32 vcc, 8, v{L}
        s_nop 1
        v_cndmask_b32 v32, v33, v32, vcc
        s_and_b32 s4, s3, 1
        s_lshl_b32 s4, s4, 5
        v_lshrrev_b32 v34, 1, v{L}
        v_add_u32 v34, s4, v34
        v_mul_u32_u24 v34, 3584, v34
        v_and_b32 v35, 1, v{L}
        v_lshl_add_u32 v34, v35, 7, v34
        s_lshl_b32 s4, s30, 8
        v_add_u32 v34, s4, v34
        s_cmp_eq_u32 s{S_KIND}, 1
        s_cselect_b64 vcc, -1, 0
        v_cndmask_b32 v{V_PW2}, v32, v34, vcc
        """)
    for par in range(2):
        Ls, adv = dma_list(1, par)
        for ins in Ls:
            a(ins)
            if ins.startswith("s_add"): a("s_nop 0")
        for ins in adv: a(ins)
    for k in range(PFD):
        for ins in pf_ops(): a(ins)
    a(f"s_waitcnt vmcnt({16 + 2*PFD})\ns_barrier")
    for ins in reads(0, 0, 0, 1): a(ins)
    a(f"s_cmp_eq_u32 s{S_ISV}, 1\ns_cbranch_scc1 K1_V")
    PF1, PF2 = (1, 2) if PFD else (0, 0)
    for order, kind in (('WA', 'K'), ('AW', 'V')):
        if kind == 'V':
            a.label("K1_V")
        pre_body(a, order, 1, opts, 2*PFD, (), opts.get('bulk', ''))
        a(f"s_mov_b32 s{S_CNT}, 6")
        a.label(f"K1_LOOP_{kind}")
        body(a, 0, order, 1, 1, opts, PF1)
        body(a, 1, order, 1, 1, opts, PF1)
        a(f"s_sub_u32 s{S_CNT}, s{S_CNT}, 1\ns_cmp_lg_u32 s{S_CNT}, 0\ns_cbranch_scc1 K1_LOOP_{kind}")
        if PFD:
            a(f"v_mov_b32 v{V_PA}, v{V_PA2}\nv_mov_b32 v{V_PW}, v{V_PW2}")
        body(a, 0, order, 1, 1, opts, PF2)
        body(a, 1, order, 1, 1, opts, PF2)
        body(a, 0, order, 1, 2, opts, PF2)
        post_body(a, 1, order, 2, 2, opts, PF2)
        stamp(a, opts, 1)
        epi_tile1(a, kind)
        stamp(a, opts, 2)
        if kind == 'K':
            a("s_branch K1_T2")
    a.label("K1_T2")
    a(f"s_cmp_eq_u32 s{S_KIND}, 2\ns_cbranch_scc1 K1_GATE")
    npf = 2 if PFD else 0
    fine = (lambda k: stamp(a, opts, 8 + k)) if opts.get('fine') else (lambda k: None)
    sp = opts.get('st_spread', [1, 3, 3, 4, 4, 4, 4])
    assert sum(sp) == NDEF
    cum = [sum(sp[:k]) for k in range(len(sp) + 1)]
    R = lambda k: range(cum[k], cum[k+1])
    pre_body(a, 'WA', 2, opts, npf + (32 - NDEF), R(0)); fine(0)
    body(a, 0, 'WA', 2, 2, opts, PF2, R(1)); fine(1)
    body(a, 1, 'WA', 2, 2, opts, PF2, R(2)); fine(2)
    body(a, 0, 'WA', 2, 2, opts, PF2, R(3)); fine(3)
    body(a, 1, 'WA', 2, 2, opts, 0, R(4)); fine(4)
    body(a, 0, 'WA', 2, 2, opts, 0, R(5)); fine(5)
    body(a, 1, 'WA', 2, None, opts, 0, R(6), final=True); fine(6)
    if opts.get('bulk_end', 1):
        bulk_pf(a, 'b')
    post_body(a, 0, 'WA', None, None, opts); fine(7)
    stamp(a, opts, 3)
    a(f"s_cmp_eq_u32 s{S_KIND}, 1\ns_cbranch_scc1 K1_EPI_F")
    epi_plain(a, 'Q')
    a("s_branch K1_DONE")
    a.label("K1_EPI_F")
    epi_ffn(a)
    a("s_branch K1_DONE")
    a.label("K1_GATE")
    for n in range(NDEF):
        sc, st = def_store(n)
        a(sc); a(st)
    if opts.get('bulk_end', 1):
        bulk_pf(a, 'b')
    gate_tile(a)
    a.label("K1_DONE")
    prof_end(a, opts, S_WS, 0)
    a.label("K1_END")
    a("s_endpgm")
    return name, kernel_desc(name, 512, 102, 256)
```

```python
from asmlib import *
from sched import *
import math, struct

LDS = 131072
def f2h(f): return "0x%08x" % struct.unpack("<I", struct.pack("<f", f))[0]

S_W = 3
SRD_K, SRD_V, SRD_WS, SRD_DBG = 8, 12, 16, 20
S_H, S_I, S_ROLE = 24, 25, 26
S_LQ, S_U0, S_N, S_EK = 27, 28, 29, 30
S_CNT = 31
S_KOFF, S_KEND, S_VOFF, S_VEND = 32, 33, 34, 35
S_M0 = 36
S_SIZE = 37
S_D0 = 38
S_MASKU = 39
S_T = 40
S_FIRST = 41
S_T0 = 44
V_LANE, V_RK, V_RV, V_D0, V_D1 = 1, 2, 3, 4, 5
V_MA = 6
V_NEG = 7
V_MX = 8
V_T = 112
V_PROF = 15
SB = [16, 48]
V_P = 80
V_MN = 96
V_L = 104
V_O = 128
A_Q = 0
A_ONE = 64
KRING, VRING = 16, 24
A_K = 68
A_V = A_K + 4*KRING
assert A_V + 4*VRING <= 256

def S(b, jb, qh): return SB[b] + 4*(2*jb + qh)
def O(i, qh): return V_O + 4*(2*i + qh)
def Pf(t2, qh): return V_P + 4*(2*t2 + qh)
def Qf(p, qh): return A_Q + 4*(2*p + qh)
def Kr(f): return A_K + 4*(f % KRING)
def Vr(f): return A_V + 4*(f % VRING)

def k_read(f, par):
    return (f"ds_read_b128 {ar(Kr(f),4)}, v{V_RK} offset:{par*32768 + f*1024}", ('rd', ('K', f)))
def v_read(f, par):
    return (f"ds_read_b128 {ar(Vr(f),4)}, v{V_RV} offset:{par*32768 + f*1024}", ('rd', ('V', f)))

MF = "v_mfma_f32_16x16x32_bf16"
def qk_mfmas(nb, cinit=True):
    out = []
    for jb in range(4):
        for p in range(8):
            for qh in range(2):
                f = 8*jb + p
                d = vr(S(nb, jb, qh), 4)
                c = vr(V_MN + 4*qh, 4) if p == 0 else d
                out.append((f"{MF} {d}, {ar(Kr(f),4)}, {ar(Qf(p,qh),4)}, {c}", [('K', f)]))
    return out
def pv_mfmas():
    out = []
    for t2 in range(2):
        for i in range(16):
            for qh in range(2):
                f = 16*t2 + i
                d = vr(O(i, qh), 4)
                out.append((f"{MF} {d}, {ar(Vr(f),4)}, {vr(Pf(t2,qh),4)}, {d}", [('V', f)]))
        for qh in range(2):
            d = vr(V_L + 4*qh, 4)
            out.append((f"{MF} {d}, {ar(A_ONE,4)}, {vr(Pf(t2,qh),4)}, {d}", []))
    return out

def softmax_ops(b, t2):
    ops = []
    for jb in (2*t2, 2*t2 + 1):
        for qh in range(2):
            s = S(b, jb, qh)
            for r in range(4):
                ops.append((f"v_exp_f32 v{s+r}, v{s+r}", 2))
    cv = []
    for qh in range(2):
        for hh in range(2):
            s = S(b, 2*t2 + hh, qh)
            for r in range(2):
                cv.append((f"v_cvt_pk_bf16_f32 v{Pf(t2,qh)+2*hh+r}, v{s+2*r}, v{s+2*r+1}", 1))
    return ops, cv

def dma_ops(srd, soff, m0base):
    L = []
    for g in range(2):
        L.append((f"s_add_u32 m0, s{S_M0}, {m0base + g*4096}", 'm0'))
        for j in range(4):
            L.append((f"buffer_load_dwordx4 v{V_D0 if g == 0 else V_D1}, {sr(srd,4)}, s{soff} offen offset:{j*1024} lds", 'dma'))
    return L

def dma_scalar(srd, off, end):
    return [f"s_cmp_lt_u32 s{off}, s{end}", f"s_cselect_b32 s{srd+2}, s{S_SIZE}, 0"]

def mask_block(a, b):
    a(f"v_subrev_u32 v{V_T}, s{S_D0}, v{V_MA}")
    el = [(jb, qh, r) for jb in range(4) for qh in range(2) for r in range(4)]
    for c in range(0, 32, 4):
        for k in range(4):
            jb, qh, r = el[c + k]
            a(f"v_cmp_ge_i32 s[{S_T0+2*k}:{S_T0+2*k+1}], {16*qh - 16*jb - r}, v{V_T}" if -16 <= 16*qh - 16*jb - r <= 64 else
              f"v_mov_b32 v{V_T+1+k}, {16*qh - 16*jb - r}\n v_cmp_ge_i32 s[{S_T0+2*k}:{S_T0+2*k+1}], v{V_T+1+k}, v{V_T}")
        a("s_nop 1")
        for k in range(4):
            jb, qh, r = el[c + k]
            a(f"v_cndmask_b32 v{S(b,jb,qh)+r}, v{V_NEG}, v{S(b,jb,qh)+r}, s[{S_T0+2*k}:{S_T0+2*k+1}]")

def rescale_block(a, b, first):
    a("s_nop 7\ns_nop 3")
    for qh in range(2):
        x, y = V_T + 2*qh, V_T + 2*qh + 1
        regs = [S(b, jb, qh) + r for jb in range(4) for r in range(4)]
        a(f"v_max3_f32 v{x}, v{regs[0]}, v{regs[1]}, v{regs[2]}")
        for k in range(3, 15, 2):
            a(f"v_max3_f32 v{x}, v{x}, v{regs[k]}, v{regs[k+1]}")
        a(f"v_max_f32 v{x}, v{x}, v{regs[15]}")
        a(f"v_mov_b32 v{y}, v{x}\ns_nop 1\nv_permlane16_swap_b32 v{x}, v{y}\ns_nop 1\nv_max_f32 v{x}, v{x}, v{y}")
        a(f"v_mov_b32 v{y}, v{x}\ns_nop 1\nv_permlane32_swap_b32 v{x}, v{y}\ns_nop 1\nv_max_f32 v{x}, v{x}, v{y}")
        if first:
            a(f"v_cmp_gt_f32 vcc, {f2h(-1e20)}, v{x}\ns_nop 1\nv_cndmask_b32 v{x}, v{x}, 0, vcc".replace("v_cndmask_b32 v%d, v%d, 0, vcc" % (x, x), "v_cndmask_b32_e64 v%d, v%d, 0, vcc" % (x, x)))
        else:
            a(f"v_max_f32 v{x}, 0, v{x}")
        for rg in regs:
            a(f"v_sub_f32 v{rg}, v{rg}, v{x}")
        for r in range(4):
            a(f"v_sub_f32 v{V_MN+4*qh+r}, v{V_MN+4*qh+r}, v{x}")
        if not first:
            a(f"v_sub_f32 v{y}, 0, v{x}\nv_exp_f32 v{y}, v{y}\ns_nop 0")
            for i in range(16):
                for r in range(4):
                    a(f"v_mul_f32 v{O(i,qh)+r}, v{O(i,qh)+r}, v{y}")
            for r in range(4):
                a(f"v_mul_f32 v{V_L+4*qh+r}, v{V_L+4*qh+r}, v{y}")
    a("s_nop 1")

def iteration(a, par, tail, opts, carried, lbl):
    nb = 1 - par
    ms = ([] if tail else qk_mfmas(nb)) + pv_mfmas()
    X = 0 if tail else 64
    sc = Sched(ms, 2)
    e0, c0 = softmax_ops(par, 0)
    e1, c1 = softmax_ops(par, 1)
    if tail:
        for ins, _ in e0 + c0: sc.pre.append((ins, None))
        for f in range(4): sc.pre.append(v_read(f, par))
        sc.pre.append(("s_nop 1", None))
        s = 0
        for ins, c in e1: s = sc.put(s, ins, c) + 1
        s += 1
        for ins, c in c1: s = sc.put(s, ins, c) + 0
        assert s < 32, s
        for f in range(4, 32):
            ins, meta = v_read(f, par)
            use = 2*f if f < 16 else 2*f + 2
            sc.put(max(0, use - 12), ins, 1, meta, force=True)
        body, out, nw = insert_lgkm_waits(sc.flat(), carried, opts['kslack'])
        for ins in body: a(ins)
        return out
    s = 1
    for ins, c in e0:
        s = sc.put(s, ins, c) + opts['e0_step']
    s = s - opts['e0_step'] + 2
    for ins, c in c0:
        s = sc.put(s, ins, c)
    assert s <= 61, s
    s = max(opts['e1_start'], 0)
    for ins, c in e1:
        s = sc.put(s, ins, c) + opts['e1_step']
    s = s - opts['e1_step'] + 2
    for ins, c in c1:
        s = sc.put(s, ins, c)
    assert s <= 95, s
    NPRE = opts['npre']
    for f in range(NPRE, 32):
        ins, meta = k_read(f, nb)
        got = sc.put(max(0, 2*f - opts['klead']), ins, 1, meta)
        assert got <= 2*f - 4, (f, got)
        assert f < KRING or got > 2*(f - KRING) + 1
    s = 0
    s = sc.put(s, "\n".join(dma_scalar(SRD_V, S_VOFF, S_VEND)), 2)
    s += 1
    for ins, kind in dma_ops(SRD_V, S_VOFF, 65536 + nb*32768):
        s = sc.put(s, ins, 1 if kind == 'm0' else opts['dmacost']) + 1
    sc.put(s, f"s_add_u32 s{S_VOFF}, s{S_VOFF}, 0x8000", 1)
    vs, ve = opts['v_start'], opts['v_end']
    for f in range(32):
        ins, meta = v_read(f, par)
        use = 64 + 2*f if f < 16 else 66 + 2*f
        got = sc.put(vs + (ve - vs)*f // 31, ins, 1, meta)
        assert got <= use - 4, (f, got, use)
        if f >= VRING:
            prev = f - VRING
            assert got > (64 + 2*prev if prev < 16 else 66 + 2*prev) + 1
    mslot = 68
    sc.put(mslot, f"s_cmp_gt_i32 s{S_MASKU}, 0\n s_cbranch_scc1 {lbl}_NOMASK\n MASKBLOCK\n{lbl}_NOMASK:", 2, None, force=True)
    regs = [SB[nb] + r for r in range(32)]
    s = mslot + 2
    s = sc.put(s, f"v_max3_f32 v{V_MX}, v{regs[0]}, v{regs[1]}, v{regs[2]}", 1) + 1
    for k in range(3, 31, 2):
        s = sc.put(s, f"v_max3_f32 v{V_MX}, v{V_MX}, v{regs[k]}, v{regs[k+1]}", 1) + 1
    s = sc.put(s, f"v_max_f32 v{V_MX}, v{V_MX}, v{regs[31]}", 1) + 1
    s = sc.put(s + 1, f"v_cmp_lt_f32 vcc, s{S_T}, v{V_MX}", 1) + 1
    sc.put(s, f"s_sub_u32 s{S_MASKU}, s{S_MASKU}, 1", 1)
    sc.put(s, f"s_sub_u32 s{S_D0}, s{S_D0}, 64", 1)
    B = opts['bar']
    sc.put(B, "s_waitcnt vmcnt(0) lgkmcnt(0)", 1, ('drain',), force=True)
    sc.put(B, "s_barrier", 1, None, force=True)
    s = B + 1
    s = sc.put(s, "\n".join(dma_scalar(SRD_K, S_KOFF, S_KEND)), 2)
    def place_dma(dl, s):
        for ins, kind in dl:
            if kind == 'm0':
                s = sc.put(s, ins, 1) + 1
            else:
                s = sc.put(s, ins, opts['dmacost']) + 1
        return s
    place_dma(dma_ops(SRD_K, S_KOFF, nb*32768), s + 1)
    pre_s = len(ms) - 2*NPRE
    for f in range(NPRE):
        ins, meta = k_read(f, par)
        sc.put(max(B + 1, pre_s + 2*f - 2), ins, 1, meta, force=True)
    last = len(ms) - 1
    sc.put(last, f"s_add_u32 s{S_KOFF}, s{S_KOFF}, 0x8000", 1, None, force=True)
    body, out, nw = insert_lgkm_waits(sc.flat(), carried, opts['kslack'])
    if opts.get('verbose'):
        over = sum(max(0, -c) for c in sc.cap)
        print(f"iter par {par}: waits {nw}, free slots {sum(max(0,c) for c in sc.cap)}, over {over}, carried out {out}")
    for ins in body:
        if 'MASKBLOCK' in ins:
            parts = ins.split("\n")
            a(parts[0]); a(parts[1])
            mask_block(a, nb)
            a.label(f"{lbl}_NOMASK")
        else:
            a(ins)
    return out

def store_frags(a, srd, soff_reg, flags, src):
    pass

def gen_k2(a, opts):
    name = "k2_attn_kernel"
    L = V_LANE
    a.raw(kernel_header(name))
    a("s_cmp_ge_u32 s2, 256\ns_cbranch_scc1 K2_END")
    shuffle_id(a, opts)
    a(f"""
    s_load_dwordx2 s[44:45], s[0:1], 104
    s_load_dwordx2 s[46:47], s[0:1], 96
    v_lshrrev_b32 v2, 6, v0
    v_and_b32 v{L}, 63, v0
    s_nop 0
    v_readfirstlane_b32 s{S_W}, v2
    """)
    if opts.get('cpf', 1):
        code_prefetch(a, None, 'K2_END', 32*1024, 48, V_T, 0, 9)
    stamp(a, opts, 0, V_PROF)
    a(f"""
    s_and_b32 s4, s2, 7
    s_lshr_b32 s5, s2, 3
    s_and_b32 s6, s5, 1
    s_lshl_b32 s{S_H}, s4, 1
    s_add_u32 s{S_H}, s{S_H}, s6
    s_lshr_b32 s5, s5, 1
    s_and_b32 s{S_I}, s5, 7
    s_lshr_b32 s{S_ROLE}, s5, 3
    s_lshl_b32 s{S_M0}, s{S_W}, 13
    s_mov_b32 s{S_SIZE}, {WS_SIZE}
    s_mov_b32 s{S_T}, {f2h(opts['thresh'])}
    v_lshlrev_b32 v{V_RK}, 4, v{L}
    v_add_u32 v{V_RV}, 0x10000, v{V_RK}
    v_add_u32 v{V_D0}, s{S_M0}, v{V_RK}
    v_add_u32 v{V_D1}, 0x1000, v{V_D0}
    v_lshrrev_b32 v{V_MA}, 4, v{L}
    v_lshlrev_b32 v{V_MA}, 2, v{V_MA}
    v_and_b32 v{V_T}, 15, v{L}
    v_sub_u32 v{V_MA}, v{V_MA}, v{V_T}
    v_mov_b32 v{V_NEG}, {f2h(-1e30)}
    v_mov_b32 v{V_T}, 0x3f803f80
    s_waitcnt lgkmcnt(0)
    """)
    for r in range(4):
        a(f"v_accvgpr_write_b32 a{A_ONE+r}, v{V_T}")
    for srd in (SRD_K, SRD_V, SRD_WS):
        a(f"s_mov_b32 s{srd}, s44\ns_mov_b32 s{srd+1}, s45\ns_mov_b32 s{srd+2}, {WS_SIZE}\ns_mov_b32 s{srd+3}, 0x20000")
    a(f"s_mov_b32 s{SRD_DBG}, s46\ns_mov_b32 s{SRD_DBG+1}, s47\ns_mov_b32 s{SRD_DBG+2}, 256\ns_mov_b32 s{SRD_DBG+3}, 0x20000")
    NA = opts.get('na', 18)
    a(f"""
    s_sub_u32 s{S_LQ}, 15, s{S_I}
    s_lshl_b32 s4, s{S_I}, 1
    s_sub_u32 s5, {32 - NA}, s4
    s_cmp_eq_u32 s{S_ROLE}, 0
    s_cselect_b32 s{S_U0}, 0, {NA}
    s_cselect_b32 s{S_N}, {NA}, s5
    s_cselect_b32 s{S_EK}, 2, 0
    s_cmp_gt_i32 s5, 0
    s_cbranch_scc1 K2_SEG
    s_cmp_eq_u32 s{S_ROLE}, 0
    s_cbranch_scc0 K2_SEG2
    s_add_u32 s{S_N}, s{S_N}, s5
    s_mov_b32 s{S_EK}, 1
    """)
    a.label("K2_SEG")
    a(f"""
    s_barrier
    s_lshl_b32 s4, s{S_H}, 5
    s_add_u32 s4, s4, s{S_U0}
    s_lshl_b32 s4, s4, 15
    s_add_u32 s{S_KOFF}, s4, {WS_K}
    s_add_u32 s{S_VOFF}, s4, {WS_V}
    s_lshl_b32 s5, s{S_N}, 15
    s_add_u32 s{S_KEND}, s{S_KOFF}, s5
    s_add_u32 s{S_VEND}, s{S_VOFF}, s5
    s_mov_b32 s{SRD_K+2}, s{S_SIZE}
    s_mov_b32 s{SRD_V+2}, s{S_SIZE}
    """)
    def dma_now(srd, off, end, m0base):
        for ins in dma_scalar(srd, off, end): a(ins)
        for ins, kind in dma_ops(srd, off, m0base):
            a(ins)
            if kind == 'm0': a("s_nop 0")
        a(f"s_add_u32 s{off}, s{off}, 0x8000")
    dma_now(SRD_K, S_KOFF, S_KEND, 0)
    a(f"""
    s_lshl_b32 s4, s{S_H}, 7
    s_lshl_b32 s5, s{S_LQ}, 3
    s_add_u32 s4, s4, s5
    s_lshl_b32 s5, s{S_W}, 1
    s_add_u32 s4, s4, s5
    s_lshl_b32 s4, s4, 13
    s_add_u32 s4, s4, {WS_Q}
    """)
    for qh in range(2):
        for pg in range(2):
            a(f"s_add_u32 s5, s4, {qh*8192 + pg*4096}")
            for pp in range(4):
                p = 4*pg + pp
                a(f"buffer_load_dwordx4 {ar(Qf(p,qh),4)}, v{V_RK}, {sr(SRD_WS,4)}, s5 offen offset:{pp*1024}")
    dma_now(SRD_V, S_VOFF, S_VEND, 65536)
    dma_now(SRD_K, S_KOFF, S_KEND, 32768)
    for r in range(136):
        a(f"v_mov_b32 v{(V_O + r) if r < 128 else (V_L + r - 128)}, 0")
    for r in range(8):
        a(f"v_mov_b32 v{V_MN+r}, 0")
    a(f"""
    s_lshl_b32 s4, s{S_LQ}, 1
    s_sub_u32 s{S_MASKU}, s4, s{S_U0}
    s_lshl_b32 s4, s{S_LQ}, 7
    s_lshl_b32 s5, s{S_W}, 5
    s_add_u32 s4, s4, s5
    s_lshl_b32 s5, s{S_U0}, 6
    s_sub_u32 s{S_D0}, s4, s5
    s_waitcnt vmcnt(16)
    s_barrier
    """)
    ms = qk_mfmas(0)
    sc = Sched(ms, 2)
    for f in range(6): sc.pre.append(k_read(f, 0))
    for f in range(6, 32):
        ins, meta = k_read(f, 0)
        sc.put(2*f - 12, ins, 1, meta)
    body, out, _ = insert_lgkm_waits(sc.flat(), [], 4)
    for ins in body: a(ins)
    a("s_nop 7")
    a(f"s_cmp_gt_i32 s{S_MASKU}, 0\ns_cbranch_scc1 K2_P_NOMASK")
    mask_block(a, 0)
    a.label("K2_P_NOMASK")
    a(f"s_sub_u32 s{S_MASKU}, s{S_MASKU}, 1\ns_sub_u32 s{S_D0}, s{S_D0}, 64")
    rescale_block(a, 0, True)
    a("s_waitcnt vmcnt(0) lgkmcnt(0)\ns_barrier")
    dma_now(SRD_K, S_KOFF, S_KEND, 0)
    NPRE = opts['npre']
    for f in range(NPRE): a(k_read(f, 1)[0])
    carried = [('K', f) for f in range(NPRE)]
    stamp(a, opts, 1, V_PROF)
    if opts.get('prof'):
        for f in range(NPRE): a(k_read(f, 1)[0])
    a(f"s_sub_u32 s{S_CNT}, s{S_N}, 1")
    a.label("K2_LOOP")
    a(f"s_cmp_eq_u32 s{S_CNT}, 0\ns_cbranch_scc1 K2_TAIL0")
    out0 = iteration(a, 0, False, opts, carried, "K2_I0")
    assert out0 == carried, (out0, carried)
    a("s_cbranch_vccnz K2_RESC0")
    a.label("K2_BACK0")
    a(f"s_sub_u32 s{S_CNT}, s{S_CNT}, 1\ns_cmp_eq_u32 s{S_CNT}, 0\ns_cbranch_scc1 K2_TAIL1")
    out1 = iteration(a, 1, False, opts, carried, "K2_I1")
    assert out1 == carried
    a("s_cbranch_vccnz K2_RESC1")
    a.label("K2_BACK1")
    a(f"s_sub_u32 s{S_CNT}, s{S_CNT}, 1\ns_branch K2_LOOP")
    a.label("K2_RESC0")
    rescale_block(a, 1, False)
    a("s_branch K2_BACK0")
    a.label("K2_RESC1")
    rescale_block(a, 0, False)
    a("s_branch K2_BACK1")
    a.label("K2_TAIL0")
    iteration(a, 0, True, opts, carried, "K2_T0")
    a("s_branch K2_EPI")
    a.label("K2_TAIL1")
    iteration(a, 1, True, opts, carried, "K2_T1")
    a.label("K2_EPI")
    stamp(a, opts, 2, V_PROF)
    a("s_waitcnt vmcnt(0) lgkmcnt(0)\ns_nop 7")
    T = V_T
    a(f"""
    s_lshl_b32 s4, s{S_LQ}, 7
    s_lshl_b32 s5, s{S_W}, 5
    s_add_u32 s4, s4, s5
    v_and_b32 v{T}, 15, v{L}
    v_add_u32 v{T}, s4, v{T}
    v_lshlrev_b32 v{T}, 2, v{T}
    s_lshl_b32 s6, s{S_H}, 3
    s_add_u32 s6, s6, s{S_I}
    s_cmp_eq_u32 s{S_EK}, 0
    s_cbranch_scc1 K2_EPI_PART
    s_mov_b32 s7, {WS_G}
    buffer_load_dword v{T+1}, v{T}, {sr(SRD_WS,4)}, s7 offen
    buffer_load_dword v{T+2}, v{T}, {sr(SRD_WS,4)}, s7 offen offset:64
    s_cmp_eq_u32 s{S_EK}, 2
    s_cbranch_scc1 K2_EPI_MERGE
    s_waitcnt vmcnt(0)
    """)
    for qh in range(2):
        a(f"v_rcp_f32 v{T+4+qh}, v{V_L+4*qh}")
    a("s_nop 0")
    for qh in range(2):
        a(f"v_mul_f32 v{T+4+qh}, v{T+4+qh}, v{T+1+qh}")
    a.label("K2_EPI_SCALE")
    a(f"""
    s_lshl_b32 s4, s{S_LQ}, 3
    s_lshl_b32 s5, s{S_W}, 1
    s_add_u32 s4, s4, s5
    s_mul_i32 s4, s4, 184
    s_lshl_b32 s5, s{S_H}, 3
    s_add_u32 s4, s4, s5
    s_lshl_b32 s4, s4, 10
    s_add_u32 s4, s4, {WS_ACT}
    """)
    def scale_store(soff_expr, flags):
        n = 0
        for qh in range(2):
            for pg in range(2):
                a(soff_expr(qh, pg))
                for pp in range(4):
                    p = 4*pg + pp
                    rg = [O(2*p, qh) + r for r in range(4)] + [O(2*p + 1, qh) + r for r in range(4)]
                    for x in rg:
                        a(f"v_mul_f32 v{x}, v{x}, v{T+4+qh}")
                    D = SB[0] + 4*(n % 8); n += 1
                    for r in range(4):
                        a(f"v_cvt_pk_bf16_f32 v{D+r}, v{rg[2*r]}, v{rg[2*r+1]}")
                    a(f"buffer_store_dwordx4 {vr(D,4)}, v{V_RK}, {sr(SRD_WS,4)}, s5 offen offset:{pp*1024} {flags}")
    scale_store(lambda qh, pg: f"s_add_u32 s5, s4, {qh*184*1024 + pg*4096}", "")
    a(f"""
    s_cmp_eq_u32 s{S_ROLE}, 0
    s_cbranch_scc1 K2_DONE
    s_branch K2_DONE
    """)
    a.label("K2_EPI_PART")
    for qh in range(2):
        a(f"v_rcp_f32 v{T+4+qh}, v{V_L+4*qh}")
        a(f"v_cmp_lt_f32 vcc, 0, v{V_L+4*qh}")
        a(f"v_sub_f32 v{T+6+qh}, 0, v{V_MN+4*qh}")
        a("s_nop 1")
        a(f"v_cndmask_b32 v{T+4+qh}, 0, v{T+4+qh}, vcc")
        a(f"v_cndmask_b32 v{T+6+qh}, v{V_NEG}, v{T+6+qh}, vcc")
    a(f"""
    s_lshl_b32 s7, s6, 2
    s_add_u32 s7, s7, s{S_W}
    s_lshl_b32 s4, s7, 14
    s_add_u32 s4, s4, {WS_PO}
    """)
    scale_store(lambda qh, pg: f"s_add_u32 s5, s4, {qh*8192 + pg*4096}", "sc1")
    a(f"""
    s_lshl_b32 s5, s7, 10
    s_add_u32 s5, s5, {WS_PS}
    v_lshlrev_b32 v{T+8}, 3, v{L}
    v_mov_b32 v{T+10}, v{T+6}
    v_mov_b32 v{T+11}, v{V_L}
    v_mov_b32 v{T+12}, v{T+7}
    v_mov_b32 v{T+13}, v{V_L+4}
    buffer_store_dwordx2 v[{T+10}:{T+11}], v{T+8}, {sr(SRD_WS,4)}, s5 offen sc1
    buffer_store_dwordx2 v[{T+12}:{T+13}], v{T+8}, {sr(SRD_WS,4)}, s5 offen offset:512 sc1
    s_waitcnt vmcnt(0)
    s_barrier
    s_cmp_lg_u32 s{S_W}, 0
    s_cbranch_scc1 K2_NOFLAG
    s_lshr_b32 s4, s6, 1
    s_lshl_b32 s4, s4, 2
    s_and_b32 s5, s6, 1
    s_lshl_b32 s5, s5, 4
    s_lshl_b32 s5, 1, s5
    v_mov_b32 v{T+8}, s4
    v_mov_b32 v{T+9}, s5
    v_cmp_eq_u32 vcc, 0, v{L}
    s_and_saveexec_b64 s[6:7], vcc
    buffer_atomic_add v{T+9}, v{T+8}, {sr(SRD_DBG,4)}, 0 offen
    s_mov_b64 exec, s[6:7]
    """)
    a.label("K2_NOFLAG")
    a.label("K2_SEG2")
    a(f"""
    s_mov_b32 s{S_LQ}, s{S_I}
    s_mov_b32 s{S_U0}, 0
    s_lshl_b32 s{S_N}, s{S_I}, 1
    s_add_u32 s{S_N}, s{S_N}, 2
    s_mov_b32 s{S_EK}, 1
    s_branch K2_SEG
    """)
    a.label("K2_EPI_MERGE")
    a(f"""
    s_lshr_b32 s4, s6, 1
    s_lshl_b32 s4, s4, 2
    s_and_b32 s5, s6, 1
    s_lshl_b32 s5, s5, 4
    v_mov_b32 v{T+8}, s4
    s_mov_b32 s7, 0x40000
    """)
    a.label("K2_POLL")
    a(f"""
    buffer_load_dword v{T+9}, v{T+8}, {sr(SRD_DBG,4)}, 0 offen sc1
    s_waitcnt vmcnt(0)
    v_readfirstlane_b32 s4, v{T+9}
    s_nop 3
    s_lshr_b32 s4, s4, s5
    s_and_b32 s4, s4, 0xffff
    s_cmp_lg_u32 s4, 0
    s_cbranch_scc1 K2_POLLED
    s_sleep 4
    s_sub_u32 s7, s7, 1
    s_cmp_lg_u32 s7, 0
    s_cbranch_scc1 K2_POLL
    """)
    a.label("K2_POLLED")
    a(f"""
    s_lshl_b32 s7, s6, 2
    s_add_u32 s7, s7, s{S_W}
    s_lshl_b32 s4, s7, 14
    s_add_u32 s4, s4, {WS_PO}
    s_lshl_b32 s5, s7, 10
    s_add_u32 s5, s5, {WS_PS}
    v_lshlrev_b32 v{T+8}, 3, v{L}
    buffer_load_dwordx2 v[{T+10}:{T+11}], v{T+8}, {sr(SRD_WS,4)}, s5 offen sc1
    buffer_load_dwordx2 v[{T+12}:{T+13}], v{T+8}, {sr(SRD_WS,4)}, s5 offen offset:512 sc1
    """)
    for qh in range(2):
        for pg in range(2):
            a(f"s_add_u32 s5, s4, {qh*8192 + pg*4096}")
            for pp in range(4):
                p = 4*pg + pp
                a(f"buffer_load_dwordx4 {vr(SB[0] + 4*(8*qh + p), 4)}, v{V_RK}, {sr(SRD_WS,4)}, s5 offen offset:{pp*1024} sc1")
    a("s_waitcnt vmcnt(16)")
    for qh in range(2):
        mB, lB = T + 10 + 2*qh, T + 11 + 2*qh
        mA, wA, wB, dn = T + 3, T + 6, T + 7, T + 14
        a(f"""
        v_sub_f32 v{mA}, 0, v{V_MN+4*qh}
        v_max_f32 v{dn}, v{mA}, v{mB}
        v_sub_f32 v{wA}, v{mA}, v{dn}
        v_sub_f32 v{wB}, v{mB}, v{dn}
        v_exp_f32 v{wA}, v{wA}
        v_exp_f32 v{wB}, v{wB}
        s_nop 0
        v_mul_f32 v{wB}, v{wB}, v{lB}
        v_fma_f32 v{dn}, v{wA}, v{V_L+4*qh}, v{wB}
        v_rcp_f32 v{dn}, v{dn}
        s_nop 0
        v_mul_f32 v{dn}, v{dn}, v{T+1+qh}
        v_mul_f32 v{T+4+qh}, v{wA}, v{dn}
        v_mul_f32 v{mB}, v{wB}, v{dn}
        """)
    a(f"""
    s_lshl_b32 s4, s{S_LQ}, 3
    s_lshl_b32 s5, s{S_W}, 1
    s_add_u32 s4, s4, s5
    s_mul_i32 s4, s4, 184
    s_lshl_b32 s5, s{S_H}, 3
    s_add_u32 s4, s4, s5
    s_lshl_b32 s4, s4, 10
    s_add_u32 s4, s4, {WS_ACT}
    """)
    cnt = 0
    for qh in range(2):
        for pg in range(2):
            a(f"s_add_u32 s5, s4, {qh*184*1024 + pg*4096}")
            for pp in range(4):
                p = 4*pg + pp
                a(f"s_waitcnt vmcnt({15 - (8*qh + p) + cnt})")
                src = SB[0] + 4*(8*qh + p)
                rg = [O(2*p, qh) + r for r in range(4)] + [O(2*p + 1, qh) + r for r in range(4)]
                for r in range(4):
                    a(f"v_lshlrev_b32 v{V_P+2*r}, 16, v{src+r}")
                    a(f"v_and_b32 v{V_P+2*r+1}, 0xffff0000, v{src+r}")
                for k, x in enumerate(rg):
                    a(f"v_mul_f32 v{x}, v{x}, v{T+4+qh}")
                for k, x in enumerate(rg):
                    a(f"v_fma_f32 v{x}, v{V_P+k}, v{T+10+2*qh}, v{x}")
                for r in range(4):
                    a(f"v_cvt_pk_bf16_f32 v{src+r}, v{rg[2*r]}, v{rg[2*r+1]}")
                a(f"buffer_store_dwordx4 {vr(src,4)}, v{V_RK}, {sr(SRD_WS,4)}, s5 offen offset:{pp*1024}")
                cnt += 1
    a.label("K2_DONE")
    prof_end(a, opts, SRD_WS, 1, V_PROF, V_T)
    a.label("K2_END")
    a("s_endpgm")
    return name, kernel_desc(name, 512, 102, 256)
```

```python
from asmlib import *
from sched import *
import struct

GRID = 256
GRID_B = 448
NS = 5
SLOT = 28672
LDS = NS * SLOT
PT = 8 * 7 * 1024

S_W = 3
SRD_WO, SRD_WD, SRD_W, SRD_WS = 8, 12, 16, 20
S_QT, S_MQ, S_KS = 32, 33, 34
S_N1 = 35
S_NST = 36
S_WOFF = 37
S_AOFF = 38
S_LDST = 39
S_M0 = 40
S_A2, S_W2 = 41, 42
S_SC = 43
V_LANE, V_L16, V_RW, V_RW2, V_RW3 = 1, 2, 3, 16, 17
V_DW = 4
V_G = 20
V_AQ = 24
V_ACC = 32
V_WF = 144
A_AF = 0
MF = "v_mfma_f32_16x16x32_bf16"

def acc(i, qb): return V_ACC + 4*(4*i + qb)
def wf(st, i): return V_WF + 28*st + 4*i
def af(slot, p, qb): return A_AF + 32*slot + 16*p + 4*qb

def w_reads(st, slot, p):
    base = [V_RW, V_RW, V_RW2, V_RW2, V_RW3][slot]
    off = (slot % 2) * SLOT
    out = []
    for i in range(7):
        for r2 in range(2):
            out.append((f"ds_read_b64_tr_b16 {vr(wf(st,i)+2*r2,2)}, v{base} offset:{off + (32*p + 16*r2)*224 + 32*i}", ('rd', (st, i, r2))))
    return out

def load_stage(slot):
    W = []
    for j in range(7):
        W.append((f"s_add_u32 m0, s{S_M0}, {slot*SLOT + j*4096}", f"buffer_load_dwordx4 v{V_DW+j}, {sr(SRD_W,4)}, s{S_WOFF} offen lds"))
    A = []
    for p in range(2):
        for qb in range(4):
            A.append(f"buffer_load_dwordx4 {ar(af(slot,p,qb),4)}, v{V_AQ+qb}, {sr(SRD_WS,4)}, s{S_AOFF} offen offset:{p*1024}")
    return W, A

def advance():
    return [f"s_add_u32 s{S_LDST}, s{S_LDST}, 1\ns_add_u32 s{S_WOFF}, s{S_WOFF}, {128*896}",
            f"s_add_u32 s{S_AOFF}, s{S_AOFF}, 4096",
            f"""s_cmp_eq_u32 s{S_LDST}, s{S_N1}
            s_cselect_b32 s{S_WOFF}, s{S_W2}, s{S_WOFF}
            s_cselect_b32 s{S_AOFF}, s{S_A2}, s{S_AOFF}
            s_cselect_b32 s{SRD_W}, s{SRD_WO}, s{SRD_W}
            s_cselect_b32 s{SRD_W+1}, s{SRD_WO+1}, s{SRD_W+1}
            s_cselect_b32 s{SRD_W+2}, s{SRD_WO+2}, s{SRD_W+2}""",
            f"""s_cmp_lt_u32 s{S_LDST}, s{S_NST}
            s_cselect_b32 s{SRD_W+2}, s{SRD_W+2}, 0
            s_cselect_b32 s{SRD_WS+6}, s{SRD_WS+6}, 0"""]

def gen_k3(a, opts):
    name = "k3_out_kernel"
    L = V_LANE
    SRD_A = SRD_WS + 4
    a.raw(kernel_header(name))
    a(f"s_cmp_ge_u32 s2, {GRID}\ns_cbranch_scc1 K3_END")
    shuffle_id(a, opts)
    a(f"""
    s_load_dwordx2 s[44:45], s[0:1], 40
    s_load_dwordx2 s[46:47], s[0:1], 72
    s_load_dwordx2 s[52:53], s[0:1], 104
    v_lshrrev_b32 v2, 6, v0
    v_and_b32 v{L}, 63, v0
    s_nop 0
    v_readfirstlane_b32 s{S_W}, v2
    """)
    if opts.get('cpf', 1):
        code_prefetch(a, None, 'K3_END', 32*1024, 48, 12, 0, 11)
    stamp(a, opts, 0, 15)
    a(f"""
    s_and_b32 s4, s2, 7
    s_lshr_b32 s5, s2, 3
    s_lshr_b32 s{S_KS}, s4, 1
    s_and_b32 s4, s4, 1
    s_lshl_b32 s4, s4, 3
    s_lshr_b32 s6, s5, 2
    s_add_u32 s{S_QT}, s4, s6
    s_and_b32 s{S_MQ}, s5, 3
    s_waitcnt lgkmcnt(0)
    s_mov_b32 s{SRD_WO}, s44
    s_mov_b32 s{SRD_WO+1}, s45
    s_mov_b32 s{SRD_WO+2}, {4096*896}
    s_mov_b32 s{SRD_WO+3}, 0x20000
    s_mov_b32 s{SRD_WD}, s46
    s_mov_b32 s{SRD_WD+1}, s47
    s_mov_b32 s{SRD_WD+2}, {1792*896}
    s_mov_b32 s{SRD_WD+3}, 0x20000
    s_mov_b32 s{SRD_WS}, s52
    s_mov_b32 s{SRD_WS+1}, s53
    s_mov_b32 s{SRD_WS+2}, {WS_SIZE}
    s_mov_b32 s{SRD_WS+3}, 0x20000
    s_mov_b32 s{SRD_A}, s52
    s_mov_b32 s{SRD_A+1}, s53
    s_mov_b32 s{SRD_A+2}, {WS_SIZE}
    s_mov_b32 s{SRD_A+3}, 0x20000
    """)
    a(f"""
    s_cmp_lt_u32 s{S_KS}, 2
    s_cselect_b32 s{S_NST}, 12, 11
    s_mov_b32 s{S_N1}, 0
    s_cmp_eq_u32 s{S_KS}, 2
    s_cselect_b32 s{S_N1}, 3, s{S_N1}
    s_cmp_eq_u32 s{S_KS}, 3
    s_cselect_b32 s{S_N1}, 11, s{S_N1}
    s_mul_i32 s4, s{S_KS}, 48
    s_mul_i32 s{S_W2}, s4, {32*896}
    s_lshl_b32 s{S_A2}, s4, 10
    s_movk_i32 s5, 128
    s_cmp_eq_u32 s{S_KS}, 3
    s_cselect_b32 s5, 140, s5
    s_cmp_lt_u32 s{S_KS}, 2
    s_cselect_b32 s5, s4, s5
    s_lshl_b32 s{S_AOFF}, s5, 10
    s_sub_u32 s6, s5, 128
    s_cmp_lt_u32 s{S_KS}, 2
    s_cselect_b32 s6, s5, s6
    s_mul_i32 s{S_WOFF}, s6, {32*896}
    s_cselect_b32 s{SRD_W}, s{SRD_WO}, s{SRD_WD}
    s_cselect_b32 s{SRD_W+1}, s{SRD_WO+1}, s{SRD_WD+1}
    s_cselect_b32 s{SRD_W+2}, s{SRD_WO+2}, s{SRD_WD+2}
    s_mov_b32 s{SRD_W+3}, 0x20000
    s_mov_b32 s{S_LDST}, 0
    s_lshl_b32 s{S_M0}, s{S_W}, 10
    """)
    a(f"""
    v_lshlrev_b32 v{V_L16}, 4, v{L}
    s_and_b32 s6, s{S_W}, 1
    s_lshr_b32 s7, s{S_W}, 1
    s_lshl_b32 s4, s{S_QT}, 3
    s_lshl_b32 s5, s6, 2
    s_add_u32 s4, s4, s5
    s_mul_i32 s4, s4, {184*1024}
    s_add_u32 s4, s4, {WS_ACT}
    s_lshl_b32 s5, s7, 11
    s_add_u32 s4, s4, s5
    v_add_u32 v{V_AQ}, s4, v{V_L16}
    """)
    for qb in range(1, 4):
        a(f"v_add_u32 v{V_AQ+qb}, {184*1024}, v{V_AQ+qb-1}")
    for j in range(7):
        a(f"""
        s_lshl_b32 s4, s{S_W}, 10
        s_add_u32 s4, s4, {4096*j}
        v_add_u32 v12, s4, v{V_L16}
        s_mov_b32 s5, {(1 << 32) // 224 + 1}
        v_mul_hi_u32 v13, v12, s5
        v_mul_u32_u24 v14, 224, v13
        v_sub_u32 v14, v12, v14
        v_mul_u32_u24 v13, 896, v13
        s_mul_i32 s5, s{S_MQ}, 224
        v_add3_u32 v{V_DW+j}, v13, v14, s5
        """)
    a(f"""
    v_lshrrev_b32 v12, 2, v{L}
    s_lshl_b32 s4, s7, 6
    v_add_u32 v12, s4, v12
    v_mul_u32_u24 v12, 224, v12
    v_and_b32 v13, 3, v{L}
    v_lshl_add_u32 v{V_RW}, v13, 3, v12
    v_add_u32 v{V_RW2}, {2*SLOT}, v{V_RW}
    v_add_u32 v{V_RW3}, {4*SLOT}, v{V_RW}
    """)
    a(f"""
    s_lshl_b32 s4, s{S_QT}, 7
    s_lshl_b32 s5, s6, 6
    s_add_u32 s4, s4, s5
    v_and_b32 v12, 15, v{L}
    v_add_u32 v12, s4, v12
    v_lshlrev_b32 v12, 2, v12
    s_mov_b32 s4, {WS_G}
    """)
    for qb in range(4):
        a(f"buffer_load_dword v{V_G+qb}, v12, {sr(SRD_WS,4)}, s4 offen offset:{64*qb}")
    PRE = NS - 1
    saved = SRD_WS

    def fix(txt):
        return txt
    global load_stage_A
    def stage_ops(slot):
        W, A = load_stage(slot)
        A = [x.replace(sr(SRD_WS, 4), sr(SRD_A, 4)) for x in A]
        return W, A
    adv = [x.replace(f"s{SRD_WS+6}", f"s{SRD_A+2}") for x in advance()]
    for s in range(PRE):
        W, A = stage_ops(s)
        for m0, ld in W:
            a(m0); a("s_nop 0"); a(ld)
        for ins in A: a(ins)
        for ins in adv: a(ins)
    for r in range(112): a(f"v_mov_b32 v{V_ACC+r}, 0")
    a(f"s_waitcnt vmcnt({15*(PRE-1)})")
    for qb in range(4):
        a(f"v_sub_f32 v{V_G+qb}, 1.0, v{V_G+qb}")
    a("s_barrier")
    for ins, _ in w_reads(0, 0, 0): a(ins)
    stamp(a, opts, 1, 15)
    if opts.get('prof'):
        for ins, _ in w_reads(0, 0, 0): a(ins)
    a(f"s_mov_b32 s{S_SC}, 0")
    a.label("K3_LOOP")
    for s in range(NS):
        nx = (s + 1) % NS
        ld = (s + PRE) % NS
        ms = []
        for p in range(2):
            for i in range(7):
                for qb in range(4):
                    ms.append((f"{MF} {vr(acc(i,qb),4)}, {vr(wf(p,i),4)}, {ar(af(s,p,qb),4)}, {vr(acc(i,qb),4)}", [(p, i, 0), (p, i, 1)]))
        sc = Sched(ms, 2)
        for k, (ins, meta) in enumerate(w_reads(1, s, 1)):
            sc.put(1 + k * 22 // 14, ins, 1, meta)
        sc.put(27, f"s_waitcnt vmcnt({15*(PRE-2)+8}) lgkmcnt(0)", 1, ('drain',), force=True)
        sc.put(27, "s_barrier", 1, None, force=True)
        for k, (ins, meta) in enumerate(w_reads(0, nx, 0)):
            sc.put(28 + k * 20 // 14, ins, 1, meta)
        W, A = stage_ops(ld)
        slot = 28
        for m0, ldi in W:
            slot = sc.put(slot, m0, 1) + 1
            slot = sc.put(slot, ldi, 1, None, force=True)
        slot = 2
        for ins in A:
            slot = sc.put(slot, ins, 1) + 3
        slot = 46
        for ins in adv:
            slot = sc.put(slot, ins, 1, None, force=True) + 2
        carried = [(0, i, r2) for i in range(7) for r2 in range(2)]
        body, out, nw = insert_lgkm_waits(sc.flat(), carried, 4)
        assert out == carried, out
        for ins in body: a(ins)
        a(f"""
        s_add_u32 s{S_SC}, s{S_SC}, 1
        s_cmp_lg_u32 s{S_SC}, s{S_N1}
        s_cbranch_scc1 K3_NOSC{s}
        s_nop 7
        """)
        for i in range(7):
            for qb in range(4):
                for r in range(4):
                    a(f"v_mul_f32 v{acc(i,qb)+r}, v{acc(i,qb)+r}, v{V_G+qb}")
        a("s_nop 1")
        a.label(f"K3_NOSC{s}")
        a(f"s_cmp_eq_u32 s{S_SC}, s{S_NST}\ns_cbranch_scc1 K3_RED")
    a("s_branch K3_LOOP")
    a.label("K3_RED")
    stamp(a, opts, 2, 15)
    a(f"""
    s_waitcnt vmcnt(0) lgkmcnt(0)
    s_barrier
    s_nop 4
    s_mul_i32 s4, s{S_W}, {14*1024}
    v_add_u32 v12, s4, v{V_L16}
    s_xor_b32 s5, s{S_W}, 2
    s_mul_i32 s5, s5, {14*1024}
    v_add_u32 v13, s5, v{V_L16}
    s_lshr_b32 s7, s{S_W}, 1
    s_cmp_eq_u32 s7, 0
    s_cbranch_scc0 K3_KH1
    """)
    for half, lbl in ((0, None), (1, "K3_KH1")):
        if lbl: a.label(lbl)
        keep = range(14*half, 14*half + 14)
        send = range(14*(1-half), 14*(1-half) + 14)
        for k, t in enumerate(send):
            a(f"ds_write_b128 v12, {vr(V_ACC+4*t,4)} offset:{k*1024}")
        a("s_waitcnt lgkmcnt(0)\ns_barrier")
        for k, t in enumerate(keep):
            a(f"ds_read_b128 {vr(V_WF+4*k,4)}, v13 offset:{k*1024}")
        a(f"""
        s_lshl_b32 s4, s{S_QT}, 2
        s_add_u32 s4, s4, s{S_MQ}
        s_lshl_b32 s4, s4, 2
        s_add_u32 s4, s4, s{S_KS}
        s_mul_i32 s4, s4, {PT}
        s_and_b32 s5, s{S_W}, 1
        s_mul_i32 s5, s5, {4*7*1024}
        s_add_u32 s4, s4, s5
        s_add_u32 s4, s4, {WS_P3}
        """)
        for k, t in enumerate(keep):
            a(f"s_waitcnt lgkmcnt({13-k})")
            for r in range(4):
                a(f"v_add_f32 v{V_ACC+4*t+r}, v{V_ACC+4*t+r}, v{V_WF+4*k+r}")
            i, qb = t // 4, t % 4
            a(f"s_add_u32 s5, s4, {(qb*7 + i)*1024}")
            a(f"buffer_store_dwordx4 {vr(V_ACC+4*t,4)}, v{V_L16}, {sr(SRD_WS,4)}, s5 offen")
        if half == 0:
            a("s_branch K3_DONE")
    a.label("K3_DONE")
    prof_end(a, opts, SRD_WS, 2, 15, 12)
    a.label("K3_END")
    a("s_endpgm")
    return name, kernel_desc(name, 256 + 32*NS, 102, 256)

def gen_k3b(a, opts):
    name = "k4_red_kernel"
    a.raw(kernel_header(name))
    a(f"""
    s_cmp_ge_u32 s2, {GRID_B}
    s_cbranch_scc1 K4_END
    s_load_dwordx2 s[4:5], s[0:1], 88
    s_load_dwordx2 s[6:7], s[0:1], 104
    v_lshrrev_b32 v2, 6, v0
    v_and_b32 v1, 63, v0
    s_nop 0
    v_readfirstlane_b32 s3, v2
    s_waitcnt lgkmcnt(0)
    s_mov_b32 s8, s4
    s_mov_b32 s9, s5
    s_mov_b32 s10, {2048*896}
    s_mov_b32 s11, 0x20000
    s_mov_b32 s12, s6
    s_mov_b32 s13, s7
    s_mov_b32 s14, {WS_SIZE}
    s_mov_b32 s15, 0x20000
    s_mul_hi_u32 s16, s2, {(1 << 32) // 7 + 1}
    s_mul_i32 s17, s16, 7
    s_sub_u32 s17, s2, s17
    s_mul_i32 s18, s16, {4*PT}
    s_mul_i32 s19, s3, {14*1024}
    s_add_u32 s18, s18, s19
    s_lshl_b32 s19, s17, 10
    s_add_u32 s18, s18, s19
    s_add_u32 s18, s18, {WS_P3}
    v_lshlrev_b32 v3, 4, v1
    """)
    for sp in range(4):
        a(f"s_add_u32 s19, s18, {sp*PT}")
        a(f"buffer_load_dwordx4 {vr(8+8*sp,4)}, v3, s[12:15], s19 offen")
        a(f"s_add_u32 s19, s19, {7*1024}")
        a(f"buffer_load_dwordx4 {vr(12+8*sp,4)}, v3, s[12:15], s19 offen")
    a(f"""
    s_lshr_b32 s20, s16, 2
    s_and_b32 s21, s16, 3
    s_lshl_b32 s20, s20, 7
    s_lshl_b32 s22, s3, 5
    s_add_u32 s20, s20, s22
    v_and_b32 v4, 15, v1
    v_bfe_u32 v5, v1, 4, 1
    v_lshl_add_u32 v4, v5, 4, v4
    v_add_u32 v4, s20, v4
    v_mul_u32_u24 v4, 896, v4
    v_lshrrev_b32 v5, 5, v1
    v_lshl_add_u32 v4, v5, 4, v4
    s_mul_i32 s21, s21, 224
    s_lshl_b32 s22, s17, 5
    s_add_u32 s21, s21, s22
    v_add_u32 v4, s21, v4
    s_waitcnt vmcnt(0)
    """)
    for r in range(8):
        a(f"v_add_f32 v{8+r}, v{8+r}, v{16+r}")
        a(f"v_add_f32 v{24+r}, v{24+r}, v{32+r}")
    for r in range(8):
        a(f"v_add_f32 v{8+r}, v{8+r}, v{24+r}")
    a("""
    v_cvt_pk_bf16_f32 v40, v8, v9
    v_cvt_pk_bf16_f32 v41, v10, v11
    v_cvt_pk_bf16_f32 v42, v12, v13
    v_cvt_pk_bf16_f32 v43, v14, v15
    s_nop 1
    v_permlane16_swap_b32 v40, v42
    v_permlane16_swap_b32 v41, v43
    buffer_store_dwordx4 v[40:43], v4, s[8:11], 0 offen
    """)
    a.label("K4_END")
    a("s_endpgm")
    return name, kernel_desc(name, 48, 32, 48)
```

```python
import sys
from asmlib import *
import gen_k1

HEADER = open('gated_mix__compressed_kv_cla__geglu_ffn__prompt.s.ref').read().split("; Override launch")[0]

def build(opts, kernels=("k1",)):
    a = Asm()
    opts = dict(opts)
    opts['last_label'] = {'k1': 'K1_END', 'k2': 'K2_END', 'k3': 'K3_END', 'k4': 'K4_END'}[list(kernels)[-1]]
    descs, launches = [], []
    if "k1" in kernels:
        n, d = gen_k1.gen_k1(a, opts); descs.append(d)
        launches.append(f"; @launch kernel={n} grid=(256,1,1) block=(256,1,1) lds=131072")
    if "k2" in kernels:
        import gen_k2
        n, d = gen_k2.gen_k2(a, opts); descs.append(d)
        launches.append(f"; @launch kernel={n} grid=(256,1,1) block=(256,1,1) lds={gen_k2.LDS}")
    if "k3" in kernels:
        import gen_k3
        n, d = gen_k3.gen_k3(a, opts); descs.append(d)
        launches.append(f"; @launch kernel={n} grid=({gen_k3.GRID},1,1) block=(256,1,1) lds={gen_k3.LDS}")
    if "k4" in kernels:
        import gen_k3
        n, d = gen_k3.gen_k3b(a, opts); descs.append(d)
        launches.append(f"; @launch kernel={n} grid=({gen_k3.GRID_B},1,1) block=(256,1,1) lds=0")
    txt = HEADER + "\n".join(launches) + "\n"
    txt += '.amdgcn_target "amdgcn-amd-amdhsa--gfx950"\n.text\n' + a.text()
    txt += '.section .rodata,"a"\n' + "".join(".p2align 6\n" + d + "\n" for d in descs)
    return txt

DEFAULT = dict(pf_dist=2, thresh=12.0, kslack=6, npre=8, klead=16, e0_step=3, e1_start=52, e1_step=2, v_start=50, v_end=108, bar=112, dmacost=2, dmagap=1, rstride=2, dma_slots=list(range(2, 66, 4)))

if __name__ == "__main__":
    opts = dict(DEFAULT)
    out = sys.argv[1]
    ks = sys.argv[2].split(",")
    for kv in sys.argv[3:]:
        k, v = kv.split("=")
        opts[k] = eval(v)
    open(out, "w").write(build(opts, ks))
```

```python
class Asm:
    def __init__(self):
        self.L = []
    def __call__(self, s):
        for ln in s.split("\n"):
            ln = ln.strip()
            if ln:
                self.L.append("    " + ln)
    def label(self, n):
        self.L.append(n + ":")
    def raw(self, s):
        self.L.append(s)
    def text(self):
        return "\n".join(self.L) + "\n"

def vr(b, n=1):
    return f"v{b}" if n == 1 else f"v[{b}:{b+n-1}]"
def ar(b, n=1):
    return f"a{b}" if n == 1 else f"a[{b}:{b+n-1}]"
def sr(b, n=1):
    return f"s{b}" if n == 1 else f"s[{b}:{b+n-1}]"

def interleave(mfmas, fillers):
    out = []
    out += fillers.get(-1, [])
    for i, m in enumerate(mfmas):
        out.append(m)
        out += fillers.get(i, [])
    return out

def kernel_header(name):
    return f".globl {name}\n.p2align 8\n.type {name},@function\n{name}:"

def kernel_desc(name, vgpr, sgpr, accum):
    return f""".amdhsa_kernel {name}
  .amdhsa_next_free_vgpr {vgpr}
  .amdhsa_next_free_sgpr {sgpr}
  .amdhsa_accum_offset {accum}
  .amdhsa_group_segment_fixed_size 0
  .amdhsa_kernarg_size 112
  .amdhsa_user_sgpr_count 2
  .amdhsa_user_sgpr_kernarg_segment_ptr 1
  .amdhsa_system_sgpr_workgroup_id_x 1
.end_amdhsa_kernel"""

A_X, A_CKV, A_WQ, A_WUK, A_WUV, A_WO, A_BX, A_WG, A_WU, A_WD, A_GW, A_OUT, A_DBG, A_WS = [8*i for i in range(14)]

MB = 1 << 20
WS_Q   = 0
WS_K   = 16 * MB
WS_V   = 32 * MB
WS_ACT = 48 * MB
WS_G   = 72 * MB
WS_PO  = 80 * MB
WS_PS  = 90 * MB
WS_P3  = 96 * MB
WS_PROF = 200 * MB
WS_SIZE = 256 * MB


def stamp(a, opts, idx, vprof=127):
    if not opts.get('prof'):
        return
    a(f"""
    s_memtime s[94:95]
    s_memrealtime s[96:97]
    s_waitcnt lgkmcnt(0)
    v_writelane_b32 v{vprof}, s94, {2*idx}
    v_writelane_b32 v{vprof}, s96, {2*idx+1}
    """)

def prof_end(a, opts, s_ws, kidx, vprof=127, vt=32):
    if not opts.get('prof'):
        return
    a("s_waitcnt vmcnt(0)")
    stamp(a, opts, 7, vprof)
    a(f"""
    s_lshl_b32 s94, s2, 2
    s_add_u32 s94, s94, s3
    s_lshl_b32 s94, s94, 8
    s_add_u32 s94, s94, {WS_PROF + kidx*(1<<20)}
    v_mbcnt_lo_u32_b32 v{vt}, -1, 0
    v_mbcnt_hi_u32_b32 v{vt}, -1, v{vt}
    v_lshlrev_b32 v{vt+1}, 2, v{vt}
    v_cmp_gt_u32 vcc, 64, v{vt}
    s_and_saveexec_b64 s[96:97], vcc
    buffer_store_dword v{vprof}, v{vt+1}, {sr(s_ws,4)}, s94 offen
    s_mov_b64 exec, s[96:97]
    """)


_cp = [0]
def code_prefetch(a, start, end, nbytes_max, s_tmp, v_tmp, v_tid, v_dummy, nthreads=256):
    _cp[0] += 1
    here = f"CPF_{_cp[0]}"
    a(f"s_getpc_b64 s[{s_tmp}:{s_tmp+1}]")
    a.label(here)
    if start is None:
        start = here
    else:
        a(f"s_add_u32 s{s_tmp}, s{s_tmp}, {start}-{here}")
        a(f"s_addc_u32 s{s_tmp+1}, s{s_tmp+1}, 0")
    n = -(-nbytes_max // (128 * nthreads))
    a(f"v_lshlrev_b32 v{v_tmp}, 7, v{v_tid}")
    for k in range(n):
        a(f"v_min_u32 v{v_tmp+1}, {end}-{start}-4, v{v_tmp}")
        a(f"global_load_dword v{v_dummy}, v{v_tmp+1}, s[{s_tmp}:{s_tmp+1}]")
        if k + 1 < n:
            a(f"v_add_u32 v{v_tmp}, {128*nthreads}, v{v_tmp}")
    return n


def shuffle_id(a, opts):
    if opts.get('shuffle'):
        a("""
        s_and_b32 s4, s2, 7
        s_lshl_b32 s4, s4, 3
        s_lshr_b32 s5, s2, 3
        s_and_b32 s5, s5, 7
        s_or_b32 s4, s4, s5
        s_andn2_b32 s2, s2, 63
        s_or_b32 s2, s2, s4
        """)
```

```python
import sys
from asmlib import *
import gen_k1

HEADER = open('gated_mix__compressed_kv_cla__geglu_ffn__prompt.s.ref').read().split("; Override launch")[0]

def build(opts, kernels=("k1",)):
    a = Asm()
    opts = dict(opts)
    opts['last_label'] = {'k1': 'K1_END', 'k2': 'K2_END', 'k3': 'K3_END', 'k4': 'K4_END'}[list(kernels)[-1]]
    descs, launches = [], []
    if "k1" in kernels:
        n, d = gen_k1.gen_k1(a, opts); descs.append(d)
        launches.append(f"; @launch kernel={n} grid=(256,1,1) block=(256,1,1) lds=131072")
    if "k2" in kernels:
        import gen_k2
        n, d = gen_k2.gen_k2(a, opts); descs.append(d)
        launches.append(f"; @launch kernel={n} grid=(256,1,1) block=(256,1,1) lds={gen_k2.LDS}")
    if "k3" in kernels:
        import gen_k3
        n, d = gen_k3.gen_k3(a, opts); descs.append(d)
        launches.append(f"; @launch kernel={n} grid=({gen_k3.GRID},1,1) block=(256,1,1) lds={gen_k3.LDS}")
    if "k4" in kernels:
        import gen_k3
        n, d = (gen_k3.gen_k4f if opts.get('fuse', 1) else gen_k3.gen_k3b)(a, opts); descs.append(d)
        launches.append(f"; @launch kernel={n} grid=({gen_k3.GRID_B},1,1) block=(256,1,1) lds=0")
    for k in range(opts.get('nop_kernels', 0)):
        n = f"z{k}_nop_kernel"
        a.raw(kernel_header(n)); a("s_endpgm")
        descs.append(kernel_desc(n, 8, 16, 8))
        launches.append(f"; @launch kernel={n} grid=(1,1,1) block=(64,1,1) lds=0")
    txt = HEADER + "\n".join(launches) + "\n"
    txt += '.amdgcn_target "amdgcn-amd-amdhsa--gfx950"\n.text\n' + a.text()
    txt += '.section .rodata,"a"\n' + "".join(".p2align 6\n" + d + "\n" for d in descs)
    return txt

DEFAULT = dict(pf_dist=2, thresh=12.0, kslack=6, npre=8, klead=16, e0_step=3, e1_start=52, e1_step=2, v_start=50, v_end=108, bar=112, dmacost=2, dmagap=1, rstride=2, dma_slots=list(range(2, 66, 4)))

if __name__ == "__main__":
    opts = dict(DEFAULT)
    out = sys.argv[1]
    ks = sys.argv[2].split(",")
    for kv in sys.argv[3:]:
        k, v = kv.split("=")
        opts[k] = eval(v)
    open(out, "w").write(build(opts, ks))
```

```python
from asmlib import *
import math, struct

OPTS = {}
S_W = 3
P = {1: dict(act=8, wgt=12, soffA=32, soffW=40, strideW=65, vDA0=4, vDA1=5, vDW0=6, vDW1=7, vW=16),
     2: dict(act=16, wgt=20, soffA=48, soffW=56, strideW=66, vDA0=8, vDA1=9, vDW0=10, vDW1=11, vW=24)}
S_WS = 24
S_M0 = 64
S_CNT = 67
S_ISV = 68
S_KIND = 69
S_OB1 = 70
S_OB2 = 71
V_LANE = 1
V_L16 = 2
V_A = 12
FR = [128, 192]
V_T = 32
V_PA, V_PW, V_PD = 14, 15, 3
V_PA2, V_PW2 = 124, 125

def f2h(f): return "0x%08x" % struct.unpack("<I", struct.pack("<f", f))[0]
def act_frag(st, j): return FR[st] + 4*j
def wgt_frag(st, i): return FR[st] + 32 + 4*i

def reads(st, par, ks, prod):
    vW = P[prod]['vW']
    out = []
    for i in range(8):
        out.append(f"ds_read_b128 {vr(act_frag(st,i),4)}, v{V_A+ks} offset:{par*32768 + i*2048}")
        for r2 in range(2):
            out.append(f"ds_read_b64_tr_b16 {vr(wgt_frag(st,i)+2*r2,2)}, v{vW+i} offset:{par*32768 + ks*8192 + r2*1024}")
    return out

def mfmas(st, order, init):
    out = []
    for i in range(8):
        for j in range(8):
            acc = ar(4*(8*i + j), 4)
            w, x = vr(wgt_frag(st,i),4), vr(act_frag(st,j),4)
            A, B = (w, x) if order == 'WA' else (x, w)
            out.append(f"v_mfma_f32_16x16x32_bf16 {acc}, {A}, {B}, {'0' if init else acc}")
    return out

def dma_list(prod, par):
    p = P[prod]
    L = []
    for g in range(2):
        L.append(f"s_add_u32 m0, s{S_M0}, {par*32768 + g*4096}")
        for jj in range(4):
            j = 4*g + jj
            v = p['vDA0'] if j % 2 == 0 else p['vDA1']
            L.append(f"buffer_load_dwordx4 v{v}, {sr(p['act'],4)}, s{p['soffA']+j} offen offset:{jj*1024} {OPTS.get('nt_a','')} lds")
    for g in range(2):
        L.append(f"s_add_u32 m0, s{S_M0}, {65536 + par*32768 + g*4096}")
        for jj in range(4):
            j = 4*g + jj
            v = p['vDW0'] if (j & 2) == 0 else p['vDW1']
            L.append(f"buffer_load_dwordx4 v{v}, {sr(p['wgt'],4)}, s{p['soffW']+j} offen offset:{jj*1024} {OPTS.get('nt_w','')} lds")
    adv = [f"v_add_u32 v{p['vDA0']}, 128, v{p['vDA0']}",
           f"v_add_u32 v{p['vDA1']}, 128, v{p['vDA1']}",
           f"v_add_u32 v{p['vDW0']}, s{p['strideW']}, v{p['vDW0']}",
           f"v_add_u32 v{p['vDW1']}, s{p['strideW']}, v{p['vDW1']}"]
    return L, adv

def place_dma(fill, prod, par, slots):
    L, adv = dma_list(prod, par)
    si = 0
    for ins in L:
        if ins.startswith("s_add"):
            s = slots[si] - 1
            fill.setdefault(s, []).append(ins)
            if s < 0: fill[s].append("s_nop 0")
        else:
            fill.setdefault(slots[si], []).append(ins); si += 1
    for k, ins in enumerate(adv):
        fill.setdefault(slots[-1] + 1 + k, []).append(ins)

def kstep(fill, ms, use_set, order, init, rd, opts):
    base = len(ms)
    ms += mfmas(use_set, order, init)
    fill.setdefault(base - 1, []).append("s_waitcnt lgkmcnt(0)")
    if rd is not None:
        for k, ins in enumerate(reads(*rd)):
            fill.setdefault(base + 1 + k*opts['rstride'], []).append(ins)

def emit(a, ms, fill):
    for ins in interleave(ms, fill):
        a(ins)

def sync(a, n=0):
    a(f"s_waitcnt vmcnt({n}) lgkmcnt(0)")
    a("s_barrier")

def pf_ops(prod=1):
    p = P[prod]
    return [f"buffer_load_dword v{V_PD}, v{V_PA}, {sr(p['act'],4)}, 0 offen {OPTS.get('nt_pa','')}",
            f"buffer_load_dword v{V_PD}, v{V_PW}, {sr(p['wgt'],4)}, 0 offen {OPTS.get('nt_pw','')}",
            f"v_add_u32 v{V_PA}, 128, v{V_PA}",
            f"v_add_u32 v{V_PW}, s{p['strideW']}, v{V_PW}"]

def pre_body(a, order, wprod, opts, nwait=0, extra=(), bulk=False):
    ms, fill = [], {}
    if bulk:
        nwait += bulk_pf(a, bulk)
    kstep(fill, ms, 0, order, True, (1, 0, 1, wprod), opts)
    nst = place_stores(fill, extra, 8, 10)
    emit(a, ms, fill); sync(a, nwait + nst)

NDEF = 23
S_ODD = 75
def def_reg(n): return V_T + 4*n
def def_store(n, reg=None):
    q = n >> 2
    sc = f"s_add_u32 s72, s{S_OB1}, {(q>>1)*16384}"
    if q & 1:
        sc += f"\ns_add_u32 s72, s72, s{S_ODD}"
    return sc, f"buffer_store_dwordx4 {vr(def_reg(n) if reg is None else reg,4)}, v{V_L16}, {sr(S_WS,4)}, s72 offen offset:{(n&3)*1024}"

def place_stores(fill, ns, s0, step):
    for k, n in enumerate(ns):
        sc, st = def_store(n)
        fill.setdefault(s0 + k*step, []).append(sc)
        fill.setdefault(s0 + k*step + 1, []).append(st)
    return len(ns)

def epi_tile1(a, kind):
    a("s_nop 7")
    TMP = FR[1]
    for n in list(range(NDEF, 32)) + list(range(NDEF)):
        q, r = n >> 2, n & 3
        if kind == 'K':
            t0, t1 = 8*(2*r) + q, 8*(2*r+1) + q
        else:
            i, p = 4*(q & 1) + r, q >> 1
            t0, t1 = 8*i + 2*p, 8*i + 2*p + 1
        T = TMP + 12*(n % 5)
        rd_acc(a, T, t0); rd_acc(a, T + 4, t1)
        D = def_reg(n) if n < NDEF else T + 8
        for k in range(4):
            a(f"v_cvt_pk_bf16_f32 v{D+k}, v{T+2*k}, v{T+2*k+1}")
        if n >= NDEF:
            sc, st = def_store(n, D)
            a(sc); a(st)


def body(a, par, order, wprod, dma, opts, pf=0, extra=(), final=False):
    ms, fill = [], {}
    n = 1 - par
    kstep(fill, ms, 1, order, False, (0, n, 0, wprod), opts)
    kstep(fill, ms, 0, order, False, (1, n, 1, wprod), opts)
    if dma is not None:
        place_dma(fill, dma, par, opts['dma_slots'])
    s0 = opts['dma_slots'][-1] + 6
    if pf:
        for k, ins in enumerate(pf_ops(pf)):
            fill.setdefault(s0 + 2*k, []).append(ins)
    nst = place_stores(fill, extra, s0 + 10, 8)
    emit(a, ms, fill)
    if final:
        a("s_waitcnt lgkmcnt(0)")
    else:
        sync(a, (2 if pf else 0) + nst)

def post_body(a, par, order, wprod_next, dma, opts, pf=0):
    ms, fill = [], {}
    kstep(fill, ms, 1, order, False, None if wprod_next is None else (0, 1 - par, 0, wprod_next), opts)
    if dma is not None:
        place_dma(fill, dma, par, list(range(2, 50, 3)))
    if pf:
        for k, ins in enumerate(pf_ops(pf)):
            fill.setdefault(54 + 2*k, []).append(ins)
    emit(a, ms, fill)

def bulk_pf(a, parts):
    a(f"""
    s_lshl_b32 s92, s2, 2
    s_add_u32 s92, s92, s{S_W}
    s_mov_b32 s31, 0x20000
    """)
    def one(lo, hi, nbytes, lanes, widx):
        a(f"""
        s_mov_b32 s28, s{lo}
        s_mov_b32 s29, s{hi}
        s_mov_b32 s30, {nbytes}
        s_mul_i32 s93, {widx}, {lanes*128}
        v_lshlrev_b32 v{V_T}, 7, v{V_LANE}
        v_add_u32 v{V_T}, s93, v{V_T}
        v_cmp_gt_u32 vcc, {lanes}, v{V_LANE}
        v_mov_b32 v{V_T+1}, 0x7f000000
        s_nop 0
        v_cndmask_b32 v{V_T}, v{V_T+1}, v{V_T}, vcc
        buffer_load_dword v{V_PD}, v{V_T}, s[28:31], 0 offen
        """)
    n = 0
    if 'a' not in parts:
        one(98, 99, 4096*896, 28, "s92")
        one(100, 101, 1792*896, 13, "s92")
        return 2
    one(16, 17, 2048*896, 14, "s92")
    one(76, 77, 448*8192, 28, "s92")
    a("""
    s_and_b32 s93, s92, 1
    s_cmp_eq_u32 s93, 0
    s_cselect_b32 s4, s84, s86
    s_cselect_b32 s5, s85, s87
    s_lshr_b32 s6, s92, 1
    """)
    one(4, 5, 448*3584, 25, "s6")
    if 'b' not in parts:
        return 3
    one(98, 99, 4096*896, 28, "s92")
    one(100, 101, 1792*896, 13, "s92")
    return 5

def rd_acc(a, dst, t):
    for r in range(4):
        a(f"v_accvgpr_read_b32 v{dst+r}, a{4*t+r}")

def epi_plain(a, kind):
    sob = S_OB2 if kind == 'Q' else S_OB1
    a("s_nop 7")
    n = 0
    if kind == 'Q':
        a(f"s_mov_b32 s73, {f2h(math.log2(math.e) / 16.0)}")
    for o in range(8):
        for p in range(4):
            T = V_T + 12*(n % 6); n += 1
            t0, t1 = (8*(2*p) + o, 8*(2*p+1) + o) if kind != 'V' else (8*o + 2*p, 8*o + 2*p + 1)
            rd_acc(a, T, t0); rd_acc(a, T + 4, t1)
            if kind == 'Q':
                for r in range(8):
                    a(f"v_mul_f32 v{T+r}, s73, v{T+r}")
            for r in range(4):
                a(f"v_cvt_pk_bf16_f32 v{T+8+r}, v{T+2*r}, v{T+2*r+1}")
            if kind == 'V':
                if o % 4 == 0:
                    pass
                a(f"s_add_u32 s72, s{sob}, {p*16384 + (o>>2)*4096}")
                a(f"buffer_store_dwordx4 {vr(T+8,4)}, v{V_L16}, {sr(S_WS,4)}, s72 offen offset:{(o&3)*1024}")
            else:
                if p == 0:
                    a(f"s_add_u32 s72, s{sob}, {o*8192}")
                a(f"buffer_store_dwordx4 {vr(T+8,4)}, v{V_L16}, {sr(S_WS,4)}, s72 offen offset:{p*1024}")

def epi_ffn(a):
    c0 = -2.0 * math.log2(math.e) * math.sqrt(2.0 / math.pi)
    c1 = c0 * 0.044715
    VC0, VC1, VONE = 120, 122, 124
    for r in range(2):
        a(f"v_mov_b32 v{VC0+r}, {f2h(c0)}")
        a(f"v_mov_b32 v{VC1+r}, {f2h(c1)}")
        a(f"v_mov_b32 v{VONE+r}, 1.0")
    a("s_nop 7")
    n = 0
    for j in range(8):
        for p in range(2):
            T = V_T + 28*(n % 3); n += 1
            G, U, X, O = T, T + 8, T + 16, T + 24
            for h in range(2):
                i = 2*p + h
                rd_acc(a, G + 4*h, 8*i + j)
                rd_acc(a, U + 4*h, 8*(i + 4) + j)
            pk = lambda op, d, x, y, z=None: a(f"v_pk_{op}_f32 {vr(d,2)}, {x}, {y}" + (f", {z}" if z else ""))
            for r in range(0, 8, 2): pk("mul", X+r, vr(G+r,2), vr(G+r,2))
            for r in range(0, 8, 2): pk("fma", X+r, vr(X+r,2), vr(VC1,2), vr(VC0,2))
            for r in range(0, 8, 2): pk("mul", X+r, vr(X+r,2), vr(G+r,2))
            for r in range(8): a(f"v_exp_f32 v{X+r}, v{X+r}")
            for r in range(0, 8, 2): pk("mul", G+r, vr(G+r,2), vr(U+r,2))
            for r in range(0, 8, 2): pk("add", X+r, vr(X+r,2), vr(VONE,2))
            for r in range(8): a(f"v_rcp_f32 v{X+r}, v{X+r}")
            a("s_nop 0")
            for r in range(0, 8, 2): pk("mul", G+r, vr(G+r,2), vr(X+r,2))
            for r in range(4): a(f"v_cvt_pk_bf16_f32 v{O+r}, v{G+2*r}, v{G+2*r+1}")
            if p == 0:
                a(f"s_add_u32 s72, s{S_OB2}, {j*184*1024}")
            a(f"buffer_store_dwordx4 {vr(O,4)}, v{V_L16}, {sr(S_WS,4)}, s72 offen offset:{p*1024}")

def gate_tile(a):
    a(f"""
    s_waitcnt vmcnt(0)
    s_mov_b32 s12, s88
    s_mov_b32 s13, s89
    s_mov_b32 s14, 896
    s_mov_b32 s15, 0x20000
    s_lshl_b32 s74, s82, 7
    s_lshl_b32 s75, s{S_W}, 5
    s_add_u32 s74, s74, s75
    v_and_b32 v32, 31, v{V_LANE}
    v_add_u32 v32, s74, v32
    v_lshrrev_b32 v33, 5, v{V_LANE}
    v_lshlrev_b32 v33, 4, v33
    s_movk_i32 s75, 896
    v_mul_lo_u32 v34, v32, s75
    v_add_u32 v34, v34, v33
    v_mov_b32 v35, 0
    """)
    for t in range(28):
        b = 40 + 8*(t % 4)
        a(f"buffer_load_dwordx4 {vr(b,4)}, v34, s[16:19], 0 offen offset:{t*32}")
        a(f"buffer_load_dwordx4 {vr(b+4,4)}, v33, s[12:15], 0 offen offset:{t*32}")
        if t % 4 == 3:
            a("s_waitcnt vmcnt(0)")
            for tt in range(4):
                bb = 40 + 8*tt
                for r in range(4):
                    a(f"v_dot2_f32_bf16 v35, v{bb+r}, v{bb+4+r}, v35")
    a(f"""
    s_nop 3
    v_mov_b32 v36, v35
    s_nop 1
    v_permlane32_swap_b32 v35, v36
    s_nop 1
    v_add_f32 v35, v35, v36
    v_mul_f32 v35, 0xbfb8aa3b, v35
    v_exp_f32 v35, v35
    s_nop 0
    v_add_f32 v35, 1.0, v35
    v_rcp_f32 v35, v35
    v_lshlrev_b32 v32, 2, v32
    v_add_u32 v32, {WS_G}, v32
    v_cmp_gt_u32 vcc, 32, v{V_LANE}
    s_and_saveexec_b64 s[76:77], vcc
    buffer_store_dword v35, v32, {sr(S_WS,4)}, 0 offen
    s_mov_b64 exec, s[76:77]
    """)

def gen_k1(a, opts):
    OPTS.clear(); OPTS.update(opts)
    name = "k1_proj_kernel"
    L = V_LANE
    a.raw(kernel_header(name))
    a("s_cmp_ge_u32 s2, 256\ns_cbranch_scc1 K1_END")
    shuffle_id(a, opts)
    a(f"""
    s_load_dwordx2 s[72:73], s[0:1], 0
    s_load_dwordx2 s[74:75], s[0:1], 8
    s_load_dwordx2 s[76:77], s[0:1], 16
    s_load_dwordx2 s[78:79], s[0:1], 24
    s_load_dwordx2 s[80:81], s[0:1], 32
    s_load_dwordx2 s[84:85], s[0:1], 56
    s_load_dwordx2 s[86:87], s[0:1], 64
    s_load_dwordx2 s[88:89], s[0:1], 80
    s_load_dwordx2 s[90:91], s[0:1], 104
    s_load_dwordx2 s[98:99], s[0:1], 40
    s_load_dwordx2 s[100:101], s[0:1], 72
    v_lshrrev_b32 v3, 6, v0
    v_and_b32 v{L}, 63, v0
    s_nop 0
    v_readfirstlane_b32 s3, v3
    """)
    if opts.get('cpf', 1):
        code_prefetch(a, None, opts.get('last_label', 'K1_END'), opts.get('code_bytes', 96*1024), 92, 32, 0, V_PD)
    stamp(a, opts, 0)
    a(f"""
    s_and_b32 s4, s2, 7
    s_lshr_b32 s5, s2, 3
    s_and_b32 s6, s5, 3
    s_lshl_b32 s7, s4, 2
    s_add_u32 s6, s6, s7
    s_and_b32 s{S_ISV}, s6, 1
    s_lshr_b32 s6, s6, 1
    s_lshr_b32 s7, s5, 2
    s_lshl_b32 s{S_M0}, s3, 13
    v_lshrrev_b32 v32, 3, v{L}
    v_lshrrev_b32 v33, 4, v{L}
    v_and_b32 v34, 7, v{L}
    v_xor_b32 v34, v34, v33
    v_lshlrev_b32 v34, 4, v34
    s_lshl_b32 s92, s3, 6
    s_lshl_b32 s93, s7, 8
    s_add_u32 s93, s93, s92
    v_add_u32 v35, s93, v32
    v_lshlrev_b32 v35, 11, v35
    v_add_u32 v{P[1]['vDA0']}, v35, v34
    v_xor_b32 v{P[1]['vDA1']}, 64, v{P[1]['vDA0']}
    v_bfe_u32 v36, v{L}, 1, 3
    v_xor_b32 v36, v36, v33
    v_lshlrev_b32 v36, 5, v36
    v_and_b32 v37, 1, v{L}
    v_lshl_add_u32 v36, v37, 4, v36
    v_xor_b32 v38, 128, v36
    s_and_b32 s92, s3, 1
    s_lshl_b32 s92, s92, 5
    v_add_u32 v37, s92, v33
    s_lshr_b32 s92, s3, 1
    s_lshl_b32 s93, s6, 9
    s_lshl_b32 s31, s92, 8
    s_add_u32 s93, s93, s31
    v_lshlrev_b32 v39, 13, v37
    v_add3_u32 v{P[1]['vDW0']}, v39, v36, s93
    v_add3_u32 v{P[1]['vDW1']}, v39, v38, s93
    """)
    for j in range(8):
        a(f"s_mov_b32 s{P[1]['soffA']+j}, {j*16384 - (j&3)*1024}")
        a(f"s_mov_b32 s{P[1]['soffW']+j}, {j*32768 - (j&3)*1024}")
    a(f"""
    s_mov_b32 s{P[1]['strideW']}, {64*8192}
    s_mov_b32 s10, {2048*2048}
    s_mov_b32 s11, 0x20000
    s_mov_b32 s14, {1024*8192}
    s_mov_b32 s15, 0x20000
    s_cmp_eq_u32 s{S_ISV}, 0
    s_waitcnt lgkmcnt(0)
    s_mov_b32 s8, s74
    s_mov_b32 s9, s75
    s_cselect_b32 s12, s78, s80
    s_cselect_b32 s13, s79, s81
    """)
    for par in range(2):
        Ls, adv = dma_list(1, par)
        for ins in Ls:
            a(ins)
            if ins.startswith("s_add"): a("s_nop 0")
        for ins in adv: a(ins)
    a(f"""
    s_mov_b32 s16, s72
    s_mov_b32 s17, s73
    s_mov_b32 s18, {2048*896}
    s_mov_b32 s19, 0x20000
    s_mov_b32 s24, s90
    s_mov_b32 s25, s91
    s_mov_b32 s26, {WS_SIZE}
    s_mov_b32 s27, 0x20000
    s_cmp_ge_u32 s5, 16
    s_cselect_b32 s{S_KIND}, 1, 0
    s_cmp_ge_u32 s5, 30
    s_cselect_b32 s{S_KIND}, 2, s{S_KIND}
    s_cmp_ge_u32 s3, 2
    s_cselect_b32 s20, s86, s84
    s_cselect_b32 s21, s87, s85
    s_cmp_eq_u32 s{S_KIND}, 1
    s_cselect_b32 s20, s20, s76
    s_cselect_b32 s21, s21, s77
    s_movk_i32 s83, 8192
    s_cselect_b32 s83, 3584, s83
    s_mul_i32 s22, s83, 448
    s_mov_b32 s23, 0x20000
    """)
    for j in range(8):
        a(f"s_mov_b32 s{P[2]['soffA']+j}, {j*7168 - (j&3)*1024}")
        a(f"s_mul_i32 s{P[2]['soffW']+j}, s83, {4*j}")
        if j & 3:
            a(f"s_sub_u32 s{P[2]['soffW']+j}, s{P[2]['soffW']+j}, {(j&3)*1024}")
    a(f"""
    s_lshl_b32 s{P[2]['strideW']}, s83, 6
    s_and_b32 s28, s5, 1
    s_lshl_b32 s29, s4, 1
    s_add_u32 s28, s28, s29
    s_lshr_b32 s29, s5, 1
    s_and_b32 s29, s29, 7
    s_sub_u32 s30, s5, 16
    s_cmp_ge_u32 s30, 7
    s_cselect_b32 s31, 1, 0
    s_mul_i32 s92, s31, 7
    s_sub_u32 s30, s30, s92
    s_and_b32 s92, s4, 1
    s_mul_i32 s92, s92, 7
    s_add_u32 s30, s30, s92
    s_and_b32 s92, s4, 6
    s_add_u32 s31, s31, s92
    s_cmp_eq_u32 s{S_KIND}, 1
    s_cselect_b32 s29, s31, s29
    """)
    a(f"""
    s_lshl_b32 s92, s3, 6
    s_lshl_b32 s93, s29, 8
    s_add_u32 s93, s93, s92
    v_add_u32 v35, s93, v32
    s_movk_i32 s93, 896
    v_mul_lo_u32 v35, v35, s93
    v_add_u32 v{P[2]['vDA0']}, v35, v34
    v_xor_b32 v{P[2]['vDA1']}, 64, v{P[2]['vDA0']}
    s_lshr_b32 s92, s3, 1
    s_lshl_b32 s31, s92, 8
    s_lshl_b32 s93, s28, 9
    s_add_u32 s93, s93, s31
    s_lshl_b32 s31, s30, 8
    s_cmp_eq_u32 s{S_KIND}, 1
    s_cselect_b32 s93, s31, s93
    v_mul_lo_u32 v39, v37, s83
    v_add3_u32 v{P[2]['vDW0']}, v39, v36, s93
    v_add3_u32 v{P[2]['vDW1']}, v39, v38, s93
    """)
    a(f"""
    v_and_b32 v32, 15, v{L}
    v_lshrrev_b32 v34, 1, v32
    v_xor_b32 v34, v34, v33
    s_and_b32 s92, s3, 1
    s_lshl_b32 s92, s92, 7
    v_add_u32 v35, s92, v32
    v_lshlrev_b32 v35, 7, v35
    """)
    for s in range(2):
        a(f"v_xor_b32 v36, {4*s}, v34")
        a(f"v_lshl_add_u32 v{V_A+s}, v36, 4, v35")
    a(f"""
    v_bfe_u32 v34, v{L}, 2, 2
    v_lshlrev_b32 v35, 11, v33
    v_lshl_add_u32 v35, v34, 8, v35
    v_and_b32 v36, 3, v{L}
    v_lshl_add_u32 v35, v36, 3, v35
    v_add_u32 v35, 0x10000, v35
    v_and_b32 v36, 1, v33
    v_lshl_or_b32 v34, v36, 2, v34
    s_lshr_b32 s92, s3, 1
    s_lshl_b32 s93, s92, 14
    s_lshl_b32 s31, s92, 2
    s_cmp_eq_u32 s{S_KIND}, 1
    s_cselect_b64 vcc, -1, 0
    """)
    for i in range(8):
        a(f"v_xor_b32 v36, {i}, v34")
        a(f"v_lshl_add_u32 v36, v36, 5, v35")
        a(f"v_add_u32 v{P[1]['vW']+i}, s93, v36")
        a(f"s_add_u32 s94, s31, {i & 3}")
        a(f"v_xor_b32 v36, s94, v34")
        a(f"v_lshl_add_u32 v36, v36, 5, v35")
        a(f"v_add_u32 v36, {(i>>2)*16384}, v36")
        a(f"v_cndmask_b32 v{P[2]['vW']+i}, v{P[1]['vW']+i}, v36, vcc")
    a(f"v_lshlrev_b32 v{V_L16}, 4, v{L}")
    a(f"""
    s_and_b32 s92, s3, 1
    s_lshr_b32 s93, s3, 1
    s_lshl_b32 s4, s6, 7
    s_lshl_b32 s5, s7, 4
    s_add_u32 s4, s4, s5
    s_lshl_b32 s5, s92, 3
    s_add_u32 s4, s4, s5
    s_lshl_b32 s4, s4, 13
    s_lshl_b32 s5, s93, 12
    s_add_u32 s5, s4, s5
    s_add_u32 s5, s5, {WS_K}
    s_lshl_b32 s31, s93, 13
    s_add_u32 s4, s4, s31
    s_add_u32 s4, s4, {WS_V}
    s_cmp_eq_u32 s{S_ISV}, 0
    s_cselect_b32 s{S_OB1}, s5, s4
    s_lshl_b32 s4, s28, 7
    s_lshl_b32 s5, s29, 4
    s_lshl_b32 s31, s92, 3
    s_add_u32 s5, s5, s31
    s_add_u32 s4, s4, s5
    s_lshl_b32 s4, s4, 13
    s_lshl_b32 s6, s93, 12
    s_add_u32 s4, s4, s6
    s_add_u32 s4, s4, {WS_Q}
    s_mul_i32 s5, s5, 184
    s_lshl_b32 s6, s30, 2
    s_add_u32 s5, s5, s6
    s_lshl_b32 s6, s93, 1
    s_add_u32 s5, s5, s6
    s_add_u32 s5, s5, 128
    s_lshl_b32 s5, s5, 10
    s_add_u32 s5, s5, {WS_ACT}
    s_cmp_eq_u32 s{S_KIND}, 1
    s_cselect_b32 s{S_OB2}, s5, s4
    s_and_b32 s4, s2, 7
    s_lshr_b32 s5, s2, 3
    s_lshl_b32 s4, s4, 1
    s_add_u32 s4, s4, s5
    s_sub_u32 s82, s4, 30
    """)
    PFD = opts.get('pf_dist', 0)
    if PFD:
        a(f"""
        s_lshr_b32 s4, s2, 3
        s_and_b32 s5, s4, 3
        s_lshr_b32 s6, s4, 2
        s_lshl_b32 s7, s6, 8
        s_lshl_b32 s5, s5, 6
        s_add_u32 s7, s7, s5
        s_lshl_b32 s5, s3, 4
        s_add_u32 s7, s7, s5
        v_add_u32 v32, s7, v{L}
        v_lshlrev_b32 v32, 11, v32
        v_add_u32 v32, {2*128}, v32
        v_mov_b32 v33, 0x7f000000
        v_cmp_gt_u32 vcc, 16, v{L}
        s_nop 1
        v_cndmask_b32 v{V_PA}, v33, v32, vcc
        s_lshl_b32 s6, s6, 3
        s_lshl_b32 s5, s3, 1
        s_add_u32 s6, s6, s5
        s_add_u32 s6, s6, 128
        v_lshrrev_b32 v32, 2, v{L}
        v_add_u32 v32, s6, v32
        v_lshlrev_b32 v32, 13, v32
        v_and_b32 v34, 3, v{L}
        v_lshl_add_u32 v32, v34, 7, v32
        s_and_b32 s4, s2, 7
        s_lshr_b32 s5, s2, 3
        s_and_b32 s5, s5, 3
        s_lshl_b32 s4, s4, 2
        s_add_u32 s4, s4, s5
        s_lshr_b32 s4, s4, 1
        s_lshl_b32 s4, s4, 9
        v_add_u32 v32, s4, v32
        v_cmp_gt_u32 vcc, 8, v{L}
        s_nop 1
        v_cndmask_b32 v{V_PW}, v33, v32, vcc
        """)
    a(f"""
    s_cmp_eq_u32 s{S_ISV}, 0
    s_movk_i32 s{S_ODD}, 4096
    s_cselect_b32 s{S_ODD}, 8192, s{S_ODD}
    """)
    if PFD:
        a(f"""
        s_lshr_b32 s4, s2, 3
        s_and_b32 s4, s4, 1
        s_lshl_b32 s4, s4, 7
        s_lshl_b32 s5, s29, 8
        s_add_u32 s4, s4, s5
        s_lshl_b32 s5, s3, 5
        s_add_u32 s4, s4, s5
        v_add_u32 v32, s4, v{L}
        s_movk_i32 s4, 896
        v_mul_lo_u32 v32, v32, s4
        v_cmp_gt_u32 vcc, 32, v{L}
        s_nop 1
        v_cndmask_b32 v{V_PA2}, v33, v32, vcc
        s_lshl_b32 s4, s29, 3
        s_lshl_b32 s5, s3, 1
        s_add_u32 s4, s4, s5
        v_lshrrev_b32 v32, 2, v{L}
        v_add_u32 v32, s4, v32
        v_lshlrev_b32 v32, 13, v32
        v_and_b32 v34, 3, v{L}
        v_lshl_add_u32 v32, v34, 7, v32
        s_lshl_b32 s4, s28, 9
        v_add_u32 v32, s4, v32
        v_cmp_gt_u32 vcc, 8, v{L}
        s_nop 1
        v_cndmask_b32 v32, v33, v32, vcc
        s_and_b32 s4, s3, 1
        s_lshl_b32 s4, s4, 5
        v_lshrrev_b32 v34, 1, v{L}
        v_add_u32 v34, s4, v34
        v_mul_u32_u24 v34, 3584, v34
        v_and_b32 v35, 1, v{L}
        v_lshl_add_u32 v34, v35, 7, v34
        s_lshl_b32 s4, s30, 8
        v_add_u32 v34, s4, v34
        s_cmp_eq_u32 s{S_KIND}, 1
        s_cselect_b64 vcc, -1, 0
        v_cndmask_b32 v{V_PW2}, v32, v34, vcc
        """)
    for k in range(PFD):
        for ins in pf_ops(): a(ins)
    a(f"s_waitcnt vmcnt({16 + 2*PFD})\ns_barrier")
    for ins in reads(0, 0, 0, 1): a(ins)
    a(f"s_cmp_eq_u32 s{S_ISV}, 1\ns_cbranch_scc1 K1_V")
    PF1, PF2 = (1, 2) if PFD else (0, 0)
    for order, kind in (('WA', 'K'), ('AW', 'V')):
        if kind == 'V':
            a.label("K1_V")
        pre_body(a, order, 1, opts, 2*PFD, (), opts.get('bulk', ''))
        a(f"s_mov_b32 s{S_CNT}, 6")
        a.label(f"K1_LOOP_{kind}")
        body(a, 0, order, 1, 1, opts, PF1)
        body(a, 1, order, 1, 1, opts, PF1)
        a(f"s_sub_u32 s{S_CNT}, s{S_CNT}, 1\ns_cmp_lg_u32 s{S_CNT}, 0\ns_cbranch_scc1 K1_LOOP_{kind}")
        if PFD:
            a(f"v_mov_b32 v{V_PA}, v{V_PA2}\nv_mov_b32 v{V_PW}, v{V_PW2}")
        body(a, 0, order, 1, 1, opts, PF2)
        body(a, 1, order, 1, 1, opts, PF2)
        body(a, 0, order, 1, 2, opts, PF2)
        post_body(a, 1, order, 2, 2, opts, PF2)
        stamp(a, opts, 1)
        epi_tile1(a, kind)
        stamp(a, opts, 2)
        if kind == 'K':
            a("s_branch K1_T2")
    a.label("K1_T2")
    a(f"s_cmp_eq_u32 s{S_KIND}, 2\ns_cbranch_scc1 K1_GATE")
    npf = 2 if PFD else 0
    fine = (lambda k: stamp(a, opts, 8 + k)) if opts.get('fine') else (lambda k: None)
    sp = opts.get('st_spread', [1, 3, 3, 4, 4, 4, 4])
    assert sum(sp) == NDEF
    cum = [sum(sp[:k]) for k in range(len(sp) + 1)]
    R = lambda k: range(cum[k], cum[k+1])
    pre_body(a, 'WA', 2, opts, npf + (32 - NDEF), R(0)); fine(0)
    body(a, 0, 'WA', 2, 2, opts, PF2, R(1)); fine(1)
    body(a, 1, 'WA', 2, 2, opts, PF2, R(2)); fine(2)
    body(a, 0, 'WA', 2, 2, opts, PF2, R(3)); fine(3)
    body(a, 1, 'WA', 2, 2, opts, 0, R(4)); fine(4)
    body(a, 0, 'WA', 2, 2, opts, 0, R(5)); fine(5)
    body(a, 1, 'WA', 2, None, opts, 0, R(6), final=True); fine(6)
    if opts.get('bulk_end', 1):
        bulk_pf(a, 'b')
    post_body(a, 0, 'WA', None, None, opts); fine(7)
    stamp(a, opts, 3)
    a(f"s_cmp_eq_u32 s{S_KIND}, 1\ns_cbranch_scc1 K1_EPI_F")
    epi_plain(a, 'Q')
    a("s_branch K1_DONE")
    a.label("K1_EPI_F")
    epi_ffn(a)
    a("s_branch K1_DONE")
    a.label("K1_GATE")
    for n in range(NDEF):
        sc, st = def_store(n)
        a(sc); a(st)
    if opts.get('bulk_end', 1):
        bulk_pf(a, 'b')
    gate_tile(a)
    a.label("K1_DONE")
    prof_end(a, opts, S_WS, 0)
    a.label("K1_END")
    a("s_endpgm")
    return name, kernel_desc(name, 512, 102, 256)
```

```python
from asmlib import *
from sched import *
import math, struct

LDS = 131072
def f2h(f): return "0x%08x" % struct.unpack("<I", struct.pack("<f", f))[0]

S_W = 3
SRD_K, SRD_V, SRD_WS, SRD_DBG = 8, 12, 16, 20
S_H, S_I, S_ROLE = 24, 25, 26
S_LQ, S_U0, S_N, S_EK = 27, 28, 29, 30
S_CNT = 31
S_KOFF, S_KEND, S_VOFF, S_VEND = 32, 33, 34, 35
S_M0 = 36
S_SIZE = 37
S_D0 = 38
S_MASKU = 39
S_T = 40
S_FIRST = 41
S_T0 = 44
V_LANE, V_RK, V_RV, V_D0, V_D1 = 1, 2, 3, 4, 5
V_MA = 6
V_NEG = 7
V_MX = 8
V_T = 112
V_PROF = 15
SB = [16, 48]
V_P = 80
V_MN = 96
V_L = 104
V_O = 128
A_Q = 0
A_ONE = 64
KRING, VRING = 16, 24
A_K = 68
A_V = A_K + 4*KRING
assert A_V + 4*VRING <= 256

def S(b, jb, qh): return SB[b] + 4*(2*jb + qh)
def O(i, qh): return V_O + 4*(2*i + qh)
def Pf(t2, qh): return V_P + 4*(2*t2 + qh)
def Qf(p, qh): return A_Q + 4*(2*p + qh)
def Kr(f): return A_K + 4*(f % KRING)
def Vr(f): return A_V + 4*(f % VRING)

def k_read(f, par):
    return (f"ds_read_b128 {ar(Kr(f),4)}, v{V_RK} offset:{par*32768 + f*1024}", ('rd', ('K', f)))
def v_read(f, par):
    return (f"ds_read_b128 {ar(Vr(f),4)}, v{V_RV} offset:{par*32768 + f*1024}", ('rd', ('V', f)))

MF = "v_mfma_f32_16x16x32_bf16"
def qk_mfmas(nb, cinit=True):
    out = []
    for jb in range(4):
        for p in range(8):
            for qh in range(2):
                f = 8*jb + p
                d = vr(S(nb, jb, qh), 4)
                c = vr(V_MN + 4*qh, 4) if p == 0 else d
                out.append((f"{MF} {d}, {ar(Kr(f),4)}, {ar(Qf(p,qh),4)}, {c}", [('K', f)]))
    return out
def pv_mfmas():
    out = []
    for t2 in range(2):
        for i in range(16):
            for qh in range(2):
                f = 16*t2 + i
                d = vr(O(i, qh), 4)
                out.append((f"{MF} {d}, {ar(Vr(f),4)}, {vr(Pf(t2,qh),4)}, {d}", [('V', f)]))
        for qh in range(2):
            d = vr(V_L + 4*qh, 4)
            out.append((f"{MF} {d}, {ar(A_ONE,4)}, {vr(Pf(t2,qh),4)}, {d}", []))
    return out

def softmax_ops(b, t2):
    ops = []
    for jb in (2*t2, 2*t2 + 1):
        for qh in range(2):
            s = S(b, jb, qh)
            for r in range(4):
                ops.append((f"v_exp_f32 v{s+r}, v{s+r}", 2))
    cv = []
    for qh in range(2):
        for hh in range(2):
            s = S(b, 2*t2 + hh, qh)
            for r in range(2):
                cv.append((f"v_cvt_pk_bf16_f32 v{Pf(t2,qh)+2*hh+r}, v{s+2*r}, v{s+2*r+1}", 1))
    return ops, cv

def dma_ops(srd, soff, m0base):
    L = []
    for g in range(2):
        L.append((f"s_add_u32 m0, s{S_M0}, {m0base + g*4096}", 'm0'))
        for j in range(4):
            L.append((f"buffer_load_dwordx4 v{V_D0 if g == 0 else V_D1}, {sr(srd,4)}, s{soff} offen offset:{j*1024} lds", 'dma'))
    return L

def dma_scalar(srd, off, end):
    return [f"s_cmp_lt_u32 s{off}, s{end}", f"s_cselect_b32 s{srd+2}, s{S_SIZE}, 0"]

def mask_block(a, b):
    a(f"v_subrev_u32 v{V_T}, s{S_D0}, v{V_MA}")
    el = [(jb, qh, r) for jb in range(4) for qh in range(2) for r in range(4)]
    for c in range(0, 32, 4):
        for k in range(4):
            jb, qh, r = el[c + k]
            a(f"v_cmp_ge_i32 s[{S_T0+2*k}:{S_T0+2*k+1}], {16*qh - 16*jb - r}, v{V_T}" if -16 <= 16*qh - 16*jb - r <= 64 else
              f"v_mov_b32 v{V_T+1+k}, {16*qh - 16*jb - r}\n v_cmp_ge_i32 s[{S_T0+2*k}:{S_T0+2*k+1}], v{V_T+1+k}, v{V_T}")
        a("s_nop 1")
        for k in range(4):
            jb, qh, r = el[c + k]
            a(f"v_cndmask_b32 v{S(b,jb,qh)+r}, v{V_NEG}, v{S(b,jb,qh)+r}, s[{S_T0+2*k}:{S_T0+2*k+1}]")

def rescale_block(a, b, first):
    a("s_nop 7\ns_nop 3")
    for qh in range(2):
        x, y = V_T + 2*qh, V_T + 2*qh + 1
        regs = [S(b, jb, qh) + r for jb in range(4) for r in range(4)]
        a(f"v_max3_f32 v{x}, v{regs[0]}, v{regs[1]}, v{regs[2]}")
        for k in range(3, 15, 2):
            a(f"v_max3_f32 v{x}, v{x}, v{regs[k]}, v{regs[k+1]}")
        a(f"v_max_f32 v{x}, v{x}, v{regs[15]}")
        a(f"v_mov_b32 v{y}, v{x}\ns_nop 1\nv_permlane16_swap_b32 v{x}, v{y}\ns_nop 1\nv_max_f32 v{x}, v{x}, v{y}")
        a(f"v_mov_b32 v{y}, v{x}\ns_nop 1\nv_permlane32_swap_b32 v{x}, v{y}\ns_nop 1\nv_max_f32 v{x}, v{x}, v{y}")
        if first:
            a(f"v_cmp_gt_f32 vcc, {f2h(-1e20)}, v{x}\ns_nop 1\nv_cndmask_b32 v{x}, v{x}, 0, vcc".replace("v_cndmask_b32 v%d, v%d, 0, vcc" % (x, x), "v_cndmask_b32_e64 v%d, v%d, 0, vcc" % (x, x)))
        else:
            a(f"v_max_f32 v{x}, 0, v{x}")
        for rg in regs:
            a(f"v_sub_f32 v{rg}, v{rg}, v{x}")
        for r in range(4):
            a(f"v_sub_f32 v{V_MN+4*qh+r}, v{V_MN+4*qh+r}, v{x}")
        if not first:
            a(f"v_sub_f32 v{y}, 0, v{x}\nv_exp_f32 v{y}, v{y}\ns_nop 0")
            for i in range(16):
                for r in range(4):
                    a(f"v_mul_f32 v{O(i,qh)+r}, v{O(i,qh)+r}, v{y}")
            for r in range(4):
                a(f"v_mul_f32 v{V_L+4*qh+r}, v{V_L+4*qh+r}, v{y}")
    a("s_nop 1")

def iteration(a, par, tail, opts, carried, lbl):
    nb = 1 - par
    ms = ([] if tail else qk_mfmas(nb)) + pv_mfmas()
    X = 0 if tail else 64
    sc = Sched(ms, 2)
    e0, c0 = softmax_ops(par, 0)
    e1, c1 = softmax_ops(par, 1)
    if tail:
        for ins, _ in e0 + c0: sc.pre.append((ins, None))
        for f in range(4): sc.pre.append(v_read(f, par))
        sc.pre.append(("s_nop 1", None))
        s = 0
        for ins, c in e1: s = sc.put(s, ins, c) + 1
        s += 1
        for ins, c in c1: s = sc.put(s, ins, c) + 0
        assert s < 32, s
        for f in range(4, 32):
            ins, meta = v_read(f, par)
            use = 2*f if f < 16 else 2*f + 2
            sc.put(max(0, use - 12), ins, 1, meta, force=True)
        body, out, nw = insert_lgkm_waits(sc.flat(), carried, opts['kslack'])
        for ins in body: a(ins)
        return out
    s = 1
    for ins, c in e0:
        s = sc.put(s, ins, c) + opts['e0_step']
    s = s - opts['e0_step'] + 2
    for ins, c in c0:
        s = sc.put(s, ins, c)
    assert s <= 61, s
    s = max(opts['e1_start'], 0)
    for ins, c in e1:
        s = sc.put(s, ins, c) + opts['e1_step']
    s = s - opts['e1_step'] + 2
    for ins, c in c1:
        s = sc.put(s, ins, c)
    assert s <= 95, s
    NPRE = opts['npre']
    for f in range(NPRE, 32):
        ins, meta = k_read(f, nb)
        got = sc.put(max(0, 2*f - opts['klead']), ins, 1, meta)
        assert got <= 2*f - 4, (f, got)
        assert f < KRING or got > 2*(f - KRING) + 1
    s = 0
    s = sc.put(s, "\n".join(dma_scalar(SRD_V, S_VOFF, S_VEND)), 2)
    s += 1
    for ins, kind in dma_ops(SRD_V, S_VOFF, 65536 + nb*32768):
        s = sc.put(s, ins, 1 if kind == 'm0' else opts['dmacost']) + 1
    sc.put(s, f"s_add_u32 s{S_VOFF}, s{S_VOFF}, 0x8000", 1)
    vs, ve = opts['v_start'], opts['v_end']
    for f in range(32):
        ins, meta = v_read(f, par)
        use = 64 + 2*f if f < 16 else 66 + 2*f
        got = sc.put(vs + (ve - vs)*f // 31, ins, 1, meta)
        assert got <= use - 4, (f, got, use)
        if f >= VRING:
            prev = f - VRING
            assert got > (64 + 2*prev if prev < 16 else 66 + 2*prev) + 1
    mslot = 68
    sc.put(mslot, f"s_cmp_gt_i32 s{S_MASKU}, 0\n s_cbranch_scc1 {lbl}_NOMASK\n MASKBLOCK\n{lbl}_NOMASK:", 2, None, force=True)
    regs = [SB[nb] + r for r in range(32)]
    s = mslot + 2
    s = sc.put(s, f"v_max3_f32 v{V_MX}, v{regs[0]}, v{regs[1]}, v{regs[2]}", 1) + 1
    for k in range(3, 31, 2):
        s = sc.put(s, f"v_max3_f32 v{V_MX}, v{V_MX}, v{regs[k]}, v{regs[k+1]}", 1) + 1
    s = sc.put(s, f"v_max_f32 v{V_MX}, v{V_MX}, v{regs[31]}", 1) + 1
    s = sc.put(s + 1, f"v_cmp_lt_f32 vcc, s{S_T}, v{V_MX}", 1) + 1
    sc.put(s, f"s_sub_u32 s{S_MASKU}, s{S_MASKU}, 1", 1)
    sc.put(s, f"s_sub_u32 s{S_D0}, s{S_D0}, 64", 1)
    B = opts['bar']
    sc.put(B, "s_waitcnt vmcnt(0) lgkmcnt(0)", 1, ('drain',), force=True)
    sc.put(B, "s_barrier", 1, None, force=True)
    s = B + 1
    s = sc.put(s, "\n".join(dma_scalar(SRD_K, S_KOFF, S_KEND)), 2)
    def place_dma(dl, s):
        for ins, kind in dl:
            if kind == 'm0':
                s = sc.put(s, ins, 1) + 1
            else:
                s = sc.put(s, ins, opts['dmacost']) + 1
        return s
    place_dma(dma_ops(SRD_K, S_KOFF, nb*32768), s + 1)
    pre_s = len(ms) - 2*NPRE
    for f in range(NPRE):
        ins, meta = k_read(f, par)
        sc.put(max(B + 1, pre_s + 2*f - 2), ins, 1, meta, force=True)
    last = len(ms) - 1
    sc.put(last, f"s_add_u32 s{S_KOFF}, s{S_KOFF}, 0x8000", 1, None, force=True)
    body, out, nw = insert_lgkm_waits(sc.flat(), carried, opts['kslack'])
    if opts.get('verbose'):
        over = sum(max(0, -c) for c in sc.cap)
        print(f"iter par {par}: waits {nw}, free slots {sum(max(0,c) for c in sc.cap)}, over {over}, carried out {out}")
    for ins in body:
        if 'MASKBLOCK' in ins:
            parts = ins.split("\n")
            a(parts[0]); a(parts[1])
            mask_block(a, nb)
            a.label(f"{lbl}_NOMASK")
        else:
            a(ins)
    return out

SRD_WO, SRD_WD, SRD_HZ = 52, 56, 60
S_SO = 64
S_OB, S_GC = 72, 73
V_DWO, V_DWD = 10, 11
V_OR = 208
V_PK = 192
def CT(qh, p): return SB[0] + 4*(8*qh + p)
def HB(sx, qh): return 80 + 4*(2*sx + qh)
def HA(sx, qh): return A_Q + 4*(2*sx + qh)
def OACC(par, ii, qh): return 128 + 32*par + 4*(2*ii + qh)
def OR(f): return A_K + 4*(f % 16)
OSLOT = [0, 65536]

def op_dma(slot):
    L = []
    for g in range(2):
        L.append((f"s_add_u32 m0, s{S_M0}, {OSLOT[slot] + g*4096}", 'm0'))
        for j in range(4):
            L.append((f"buffer_load_dwordx4 v{V_DWO}, {sr(SRD_WO,4)}, s{S_SO+4*g+j} offen offset:{j*1024} lds", 'dma'))
    L.append((f"s_lshr_b32 s74, s{S_M0}, 1\ns_add_u32 m0, s74, {OSLOT[slot] + 32768}", 'm0'))
    for j in range(4):
        L.append((f"buffer_load_dwordx4 v{V_DWD}, {sr(SRD_WD,4)}, s{S_SO+j} offen offset:{j*1024} lds", 'dma'))
    adv = [f"v_add_u32 v{V_DWO}, 128, v{V_DWO}", f"v_add_u32 v{V_DWD}, 128, v{V_DWD}"]
    return L, adv

def op_read(f, slot):
    ii, k = f // 12, f % 12
    base = 32768 + 32*k*128 if k < 4 else 32*(k - 4)*128
    return [(f"ds_read_b64_tr_b16 {ar(OR(f) + 2*r2, 2)}, v{V_OR + 4*slot + ii} offset:{base + r2*2048}", ('rd', ('W', f, r2))) for r2 in range(2)]

def op_store(a_or_none, par, ii):
    cv = []
    for qh in range(2):
        t = OACC(par, ii, qh)
        for r in range(2):
            cv.append(f"v_cvt_pk_bf16_f32 v{V_PK + 4*ii + 2*qh + r}, v{t+2*r}, v{t+2*r+1}")
    st = [f"s_add_u32 s75, s{S_OB}, {ii*16384}", f"buffer_store_dwordx4 {vr(V_PK + 4*ii, 4)}, v{V_RK}, {sr(SRD_WS,4)}, s75 offen"]
    return cv, st

ONPRE = 8
def op_group(a, par, first, opts, carried):
    ms = []
    for ii in range(4):
        for k in range(12):
            f = 12*ii + k
            for qh in range(2):
                d = vr(OACC(par, ii, qh), 4)
                b = vr(HB(k, qh), 4) if k < 4 else vr(CT(qh, k - 4), 4)
                ms.append((f"{MF} {d}, {ar(OR(f),4)}, {b}, {'0' if k == 0 else d}", [('W', f, 0), ('W', f, 1)]))
    sc = Sched(ms, 2)
    B = 80
    for f in range(ONPRE, 48):
        for r2, (ins, meta) in enumerate(op_read(f, par)):
            got = sc.put(max(0, (f - ONPRE) * 37 // 20 - 0), ins, 1, meta)
            assert got <= 2*f - 4 and got < B - 2, (f, got)
            assert f < 16 or got > 2*(f - 16) + 1, (f, got)
    s = 1
    if not first:
        s = sc.put(s, f"s_cmp_lt_u32 s{S_GC}, 6\ns_cselect_b32 s{SRD_WO+2}, s76, 0\ns_cselect_b32 s{SRD_WD+2}, s77, 0", 2, None, force=True) + 1
        L, adv = op_dma(1 - par)
        for ins, kind in L:
            s = sc.put(s, ins, 1 if kind == 'm0' and "\n" not in ins else 2) + 1
        for ins in adv:
            s = sc.put(s, ins, 1)
        s = max(s + 1, 12)
        for ii in range(4):
            cv, st = op_store(None, 1 - par, ii)
            for ins in cv: s = sc.put(s, ins, 1)
            s = sc.put(s + 1, st[0], 1)
            s = sc.put(s + 1, st[1], 2) + 1
        assert s < B, s
        sc.put(s, f"s_add_u32 s{S_OB}, s{S_OB}, {4*16384}", 1)
    sc.put(B, f"s_waitcnt vmcnt({0 if first else 4}) lgkmcnt(0)", 1, ('drain',), force=True)
    sc.put(B, "s_barrier", 1, None, force=True)
    k = 0
    for f in range(ONPRE):
        for ins, meta in op_read(f, 1 - par):
            sc.put(B + 1 + k * 14 // 16, ins, 1, meta, force=True); k += 1
    sc.put(95, f"s_add_u32 s{S_GC}, s{S_GC}, 1", 1, None, force=True)
    body, out, nw = insert_lgkm_waits(sc.flat(), carried, 5)
    if opts.get('verbose'):
        print(f"outproj group par {par} first {first}: waits {nw}, free {sum(max(0,c) for c in sc.cap)}, over {sum(max(0,-c) for c in sc.cap)}")
    for ins in body: a(ins)
    return out

def outproj_issue(a):
    L = V_LANE
    a(f"""
    s_lshr_b32 s4, s{S_H}, 1
    s_mul_i32 s4, s4, 7
    s_and_b32 s5, s{S_H}, 1
    s_lshl_b32 s7, s5, 2
    s_add_u32 s4, s4, s7
    s_cmp_eq_u32 s5, 0
    s_cselect_b32 s{SRD_HZ+2}, s{S_SIZE}, 0
    s_mov_b32 s{SRD_HZ}, s{SRD_WS}
    s_mov_b32 s{SRD_HZ+1}, s{SRD_WS+1}
    s_mov_b32 s{SRD_HZ+3}, 0x20000
    s_lshl_b32 s7, s{S_LQ}, 3
    s_lshl_b32 s5, s{S_W}, 1
    s_add_u32 s7, s7, s5
    s_mul_i32 s7, s7, 184
    s_add_u32 s7, s7, s4
    s_add_u32 s7, s7, 128
    s_lshl_b32 s7, s7, 10
    s_add_u32 s7, s7, {WS_ACT}
    s_add_u32 s5, s7, {184*1024}
    """)
    for sx in range(4):
        srd = SRD_HZ if sx == 3 else SRD_WS
        a(f"buffer_load_dwordx4 {ar(HA(sx,0),4)}, v{V_RK}, {sr(srd,4)}, s7 offen offset:{sx*1024}")
        a(f"buffer_load_dwordx4 {ar(HA(sx,1),4)}, v{V_RK}, {sr(srd,4)}, s5 offen offset:{sx*1024}")
    a(f"""
    v_lshrrev_b32 v{V_DWO}, 3, v{L}
    v_mul_u32_u24 v{V_DWO}, 896, v{V_DWO}
    v_lshrrev_b32 v{V_DWD}, 4, v{L}
    v_lshlrev_b32 v{V_DWD}, 1, v{V_DWD}
    v_and_b32 v12, 7, v{L}
    v_xor_b32 v{V_DWD}, v{V_DWD}, v12
    v_lshl_add_u32 v{V_DWO}, v{V_DWD}, 4, v{V_DWO}
    s_lshl_b32 s4, s4, 5
    s_lshl_b32 s5, s{S_W}, 5
    s_add_u32 s4, s4, s5
    s_mul_i32 s4, s4, 896
    v_add_u32 v{V_DWD}, s4, v{V_DWO}
    s_lshl_b32 s4, s{S_H}, 8
    s_lshl_b32 s5, s{S_W}, 6
    s_add_u32 s4, s4, s5
    s_mul_i32 s4, s4, 896
    v_add_u32 v{V_DWO}, s4, v{V_DWO}
    s_mov_b32 s{SRD_WO}, s78
    s_mov_b32 s{SRD_WO+1}, s79
    s_mov_b32 s{SRD_WO+2}, {4096*896}
    s_mov_b32 s{SRD_WO+3}, 0x20000
    s_mov_b32 s{SRD_WD}, s80
    s_mov_b32 s{SRD_WD+1}, s81
    s_mov_b32 s{SRD_WD+2}, {1792*896}
    s_mov_b32 s{SRD_WD+3}, 0x20000
    s_mov_b32 s76, {4096*896}
    s_mov_b32 s77, {1792*896}
    """)
    for j in range(8):
        a(f"s_mov_b32 s{S_SO+j}, {j*7168 - (j&3)*1024}")
    for slot in range(2):
        Ls, adv = op_dma(slot)
        for ins, kind in Ls:
            a(ins)
            if kind == 'm0': a("s_nop 0")
        for ins in adv: a(ins)

def outproj_run(a, opts, T):
    L = V_LANE
    stamp(a, opts, 3, V_PROF)
    a("s_waitcnt vmcnt(24)")
    for qh in range(2):
        a(f"v_sub_f32 v{T+4+qh}, 1.0, v{T+1+qh}")
    for sx in range(4):
        for qh in range(2):
            for r in range(4):
                d = HB(sx, qh) + r
                a(f"""
                v_accvgpr_read_b32 v{T+8}, a{HA(sx,qh)+r}
                v_lshlrev_b32 v{T+9}, 16, v{T+8}
                v_and_b32 v{T+8}, 0xffff0000, v{T+8}
                v_mul_f32 v{T+9}, v{T+9}, v{T+4+qh}
                v_mul_f32 v{T+8}, v{T+8}, v{T+4+qh}
                v_cvt_pk_bf16_f32 v{d}, v{T+9}, v{T+8}
                """)
    a(f"""
    v_lshrrev_b32 v{T}, 2, v{L}
    v_lshlrev_b32 v{T+1}, 7, v{T}
    v_and_b32 v{T+2}, 3, v{L}
    v_lshl_add_u32 v{T+1}, v{T+2}, 3, v{T+1}
    v_lshrrev_b32 v{T}, 1, v{T}
    v_and_b32 v{T}, 3, v{T}
    """)
    for ii in range(4):
        a(f"v_xor_b32 v{T+2}, {ii}, v{T}")
        a(f"v_lshl_add_u32 v{V_OR+ii}, v{T+2}, 5, v{T+1}")
        a(f"v_add_u32 v{V_OR+4+ii}, 0x10000, v{V_OR+ii}")
    a(f"""
    s_lshl_b32 s4, s{S_LQ}, 2
    s_add_u32 s4, s4, s{S_W}
    s_mul_i32 s4, s4, {28*16}
    s_add_u32 s4, s4, s{S_H}
    s_lshl_b32 s4, s4, 10
    s_add_u32 s{S_OB}, s4, {WS_P3}
    s_mov_b32 s{S_GC}, 0
    s_waitcnt vmcnt(12)
    s_barrier
    """)
    stamp(a, opts, 4, V_PROF)
    carried = []
    for f in range(ONPRE):
        for ins, meta in op_read(f, 0):
            a(ins); carried.append(meta[1])
    out = op_group(a, 0, True, opts, carried)
    assert out == carried
    if opts.get('prof'):
        stamp(a, opts, 5, V_PROF)
        for f in range(ONPRE):
            for ins, meta in op_read(f, 1): a(ins)
    a.label("K2_OLOOP")
    out = op_group(a, 1, False, opts, carried); assert out == carried
    out = op_group(a, 0, False, opts, carried); assert out == carried
    a(f"s_cmp_lt_u32 s{S_GC}, 7\ns_cbranch_scc1 K2_OLOOP")
    stamp(a, opts, 6, V_PROF)
    a("s_nop 7")
    for ii in range(4):
        cv, st = op_store(None, 0, ii)
        for ins in cv + st: a(ins)

def store_frags(a, srd, soff_reg, flags, src):
    pass

def gen_k2(a, opts):
    name = "k2_attn_kernel"
    L = V_LANE
    a.raw(kernel_header(name))
    a("s_cmp_ge_u32 s2, 256\ns_cbranch_scc1 K2_END")
    shuffle_id(a, opts)
    a(f"""
    s_load_dwordx2 s[44:45], s[0:1], 104
    s_load_dwordx2 s[46:47], s[0:1], 96
    s_load_dwordx2 s[78:79], s[0:1], 40
    s_load_dwordx2 s[80:81], s[0:1], 72
    v_lshrrev_b32 v2, 6, v0
    v_and_b32 v{L}, 63, v0
    s_nop 0
    v_readfirstlane_b32 s{S_W}, v2
    """)
    if opts.get('cpf', 1):
        code_prefetch(a, None, 'K2_END', 32*1024, 48, V_T, 0, 9)
    stamp(a, opts, 0, V_PROF)
    a(f"""
    s_and_b32 s4, s2, 7
    s_lshr_b32 s5, s2, 3
    s_and_b32 s6, s5, 1
    s_lshl_b32 s{S_H}, s4, 1
    s_add_u32 s{S_H}, s{S_H}, s6
    s_lshr_b32 s5, s5, 1
    s_and_b32 s{S_I}, s5, 7
    s_lshr_b32 s{S_ROLE}, s5, 3
    s_lshl_b32 s{S_M0}, s{S_W}, 13
    s_mov_b32 s{S_SIZE}, {WS_SIZE}
    v_lshlrev_b32 v{V_RK}, 4, v{L}
    v_add_u32 v{V_D0}, s{S_M0}, v{V_RK}
    v_add_u32 v{V_D1}, 0x1000, v{V_D0}
    """)
    for srd in (SRD_K, SRD_V, SRD_WS):
        a(f"s_mov_b32 s{srd+2}, {WS_SIZE}\ns_mov_b32 s{srd+3}, 0x20000")
    late_setup = f"""
    s_mov_b32 s{S_T}, {f2h(opts['thresh'])}
    v_add_u32 v{V_RV}, 0x10000, v{V_RK}
    v_lshrrev_b32 v{V_MA}, 4, v{L}
    v_lshlrev_b32 v{V_MA}, 2, v{V_MA}
    v_and_b32 v{V_T}, 15, v{L}
    v_sub_u32 v{V_MA}, v{V_MA}, v{V_T}
    v_mov_b32 v{V_NEG}, {f2h(-1e30)}
    v_mov_b32 v{V_T}, 0x3f803f80
    v_accvgpr_write_b32 a{A_ONE}, v{V_T}
    v_accvgpr_write_b32 a{A_ONE+1}, v{V_T}
    v_accvgpr_write_b32 a{A_ONE+2}, v{V_T}
    v_accvgpr_write_b32 a{A_ONE+3}, v{V_T}
    """
    NA = opts.get('na', 18)
    a(f"""
    s_sub_u32 s{S_LQ}, 15, s{S_I}
    s_lshl_b32 s4, s{S_I}, 1
    s_sub_u32 s5, {32 - NA}, s4
    s_cmp_eq_u32 s{S_ROLE}, 0
    s_cselect_b32 s{S_U0}, 0, {NA}
    s_cselect_b32 s{S_N}, {NA}, s5
    s_cselect_b32 s{S_EK}, 2, 0
    s_waitcnt lgkmcnt(0)
    s_mov_b32 s{SRD_K}, s44
    s_mov_b32 s{SRD_K+1}, s45
    s_mov_b32 s{SRD_V}, s44
    s_mov_b32 s{SRD_V+1}, s45
    s_mov_b32 s{SRD_WS}, s44
    s_mov_b32 s{SRD_WS+1}, s45
    s_mov_b32 s{SRD_DBG}, s46
    s_mov_b32 s{SRD_DBG+1}, s47
    s_mov_b32 s{SRD_DBG+2}, 256
    s_mov_b32 s{SRD_DBG+3}, 0x20000
    s_cmp_gt_i32 s5, 0
    s_cbranch_scc1 K2_SEG
    s_cmp_eq_u32 s{S_ROLE}, 0
    s_cbranch_scc0 K2_SEG2
    s_add_u32 s{S_N}, s{S_N}, s5
    s_mov_b32 s{S_EK}, 1
    """)
    a.label("K2_SEG")
    a(f"""
    s_barrier
    s_lshl_b32 s4, s{S_H}, 5
    s_add_u32 s4, s4, s{S_U0}
    s_lshl_b32 s4, s4, 15
    s_add_u32 s{S_KOFF}, s4, {WS_K}
    s_add_u32 s{S_VOFF}, s4, {WS_V}
    s_lshl_b32 s5, s{S_N}, 15
    s_add_u32 s{S_KEND}, s{S_KOFF}, s5
    s_add_u32 s{S_VEND}, s{S_VOFF}, s5
    s_mov_b32 s{SRD_K+2}, s{S_SIZE}
    s_mov_b32 s{SRD_V+2}, s{S_SIZE}
    """)
    def dma_now(srd, off, end, m0base):
        for ins in dma_scalar(srd, off, end): a(ins)
        for ins, kind in dma_ops(srd, off, m0base):
            a(ins)
            if kind == 'm0': a("s_nop 0")
        a(f"s_add_u32 s{off}, s{off}, 0x8000")
    dma_now(SRD_K, S_KOFF, S_KEND, 0)
    a(f"""
    s_lshl_b32 s4, s{S_H}, 7
    s_lshl_b32 s5, s{S_LQ}, 3
    s_add_u32 s4, s4, s5
    s_lshl_b32 s5, s{S_W}, 1
    s_add_u32 s4, s4, s5
    s_lshl_b32 s4, s4, 13
    s_add_u32 s4, s4, {WS_Q}
    """)
    for qh in range(2):
        for pg in range(2):
            a(f"s_add_u32 s5, s4, {qh*8192 + pg*4096}")
            for pp in range(4):
                p = 4*pg + pp
                a(f"buffer_load_dwordx4 {ar(Qf(p,qh),4)}, v{V_RK}, {sr(SRD_WS,4)}, s5 offen offset:{pp*1024}")
    dma_now(SRD_V, S_VOFF, S_VEND, 65536)
    dma_now(SRD_K, S_KOFF, S_KEND, 32768)
    a(late_setup)
    for r in range(136):
        a(f"v_mov_b32 v{(V_O + r) if r < 128 else (V_L + r - 128)}, 0")
    for r in range(8):
        a(f"v_mov_b32 v{V_MN+r}, 0")
    a(f"""
    s_lshl_b32 s4, s{S_LQ}, 1
    s_sub_u32 s{S_MASKU}, s4, s{S_U0}
    s_lshl_b32 s4, s{S_LQ}, 7
    s_lshl_b32 s5, s{S_W}, 5
    s_add_u32 s4, s4, s5
    s_lshl_b32 s5, s{S_U0}, 6
    s_sub_u32 s{S_D0}, s4, s5
    s_waitcnt vmcnt(16)
    s_barrier
    """)
    ms = qk_mfmas(0)
    sc = Sched(ms, 2)
    for f in range(6): sc.pre.append(k_read(f, 0))
    for f in range(6, 32):
        ins, meta = k_read(f, 0)
        sc.put(2*f - 12, ins, 1, meta)
    body, out, _ = insert_lgkm_waits(sc.flat(), [], 4)
    for ins in body: a(ins)
    a("s_nop 7")
    a(f"s_cmp_gt_i32 s{S_MASKU}, 0\ns_cbranch_scc1 K2_P_NOMASK")
    mask_block(a, 0)
    a.label("K2_P_NOMASK")
    a(f"s_sub_u32 s{S_MASKU}, s{S_MASKU}, 1\ns_sub_u32 s{S_D0}, s{S_D0}, 64")
    rescale_block(a, 0, True)
    a("s_waitcnt vmcnt(0) lgkmcnt(0)\ns_barrier")
    dma_now(SRD_K, S_KOFF, S_KEND, 0)
    NPRE = opts['npre']
    for f in range(NPRE): a(k_read(f, 1)[0])
    carried = [('K', f) for f in range(NPRE)]
    stamp(a, opts, 1, V_PROF)
    if opts.get('prof'):
        for f in range(NPRE): a(k_read(f, 1)[0])
    a(f"s_sub_u32 s{S_CNT}, s{S_N}, 1")
    a.label("K2_LOOP")
    a(f"s_cmp_eq_u32 s{S_CNT}, 0\ns_cbranch_scc1 K2_TAIL0")
    out0 = iteration(a, 0, False, opts, carried, "K2_I0")
    assert out0 == carried, (out0, carried)
    a("s_cbranch_vccnz K2_RESC0")
    a.label("K2_BACK0")
    a(f"s_sub_u32 s{S_CNT}, s{S_CNT}, 1\ns_cmp_eq_u32 s{S_CNT}, 0\ns_cbranch_scc1 K2_TAIL1")
    out1 = iteration(a, 1, False, opts, carried, "K2_I1")
    assert out1 == carried
    a("s_cbranch_vccnz K2_RESC1")
    a.label("K2_BACK1")
    a(f"s_sub_u32 s{S_CNT}, s{S_CNT}, 1\ns_branch K2_LOOP")
    a.label("K2_RESC0")
    rescale_block(a, 1, False)
    a("s_branch K2_BACK0")
    a.label("K2_RESC1")
    rescale_block(a, 0, False)
    a("s_branch K2_BACK1")
    a.label("K2_TAIL0")
    iteration(a, 0, True, opts, carried, "K2_T0")
    a("s_branch K2_EPI")
    a.label("K2_TAIL1")
    iteration(a, 1, True, opts, carried, "K2_T1")
    a.label("K2_EPI")
    stamp(a, opts, 2, V_PROF)
    a("s_waitcnt vmcnt(0) lgkmcnt(0)\ns_nop 7")
    T = V_T
    FUSE = opts.get('fuse', 1)
    a(f"""
    s_lshl_b32 s4, s{S_LQ}, 7
    s_lshl_b32 s5, s{S_W}, 5
    s_add_u32 s4, s4, s5
    v_and_b32 v{T}, 15, v{L}
    v_add_u32 v{T}, s4, v{T}
    v_lshlrev_b32 v{T}, 2, v{T}
    s_lshl_b32 s6, s{S_H}, 3
    s_add_u32 s6, s6, s{S_I}
    s_cmp_eq_u32 s{S_EK}, 0
    s_cbranch_scc1 K2_EPI_PART
    {'s_barrier' if FUSE else ''}
    s_mov_b32 s7, {WS_G}
    buffer_load_dword v{T+1}, v{T}, {sr(SRD_WS,4)}, s7 offen
    buffer_load_dword v{T+2}, v{T}, {sr(SRD_WS,4)}, s7 offen offset:64
    s_cmp_eq_u32 s{S_EK}, 2
    s_cbranch_scc1 K2_EPI_MERGE
    """)
    if FUSE:
        outproj_issue(a)
        a("s_waitcnt vmcnt(32)")
    else:
        a("s_waitcnt vmcnt(0)")
    for qh in range(2):
        a(f"v_rcp_f32 v{T+4+qh}, v{V_L+4*qh}")
    a("s_nop 0")
    for qh in range(2):
        a(f"v_mul_f32 v{T+4+qh}, v{T+4+qh}, v{T+1+qh}")
    a.label("K2_EPI_SCALE")
    a(f"""
    s_lshl_b32 s4, s{S_LQ}, 3
    s_lshl_b32 s5, s{S_W}, 1
    s_add_u32 s4, s4, s5
    s_mul_i32 s4, s4, 184
    s_lshl_b32 s5, s{S_H}, 3
    s_add_u32 s4, s4, s5
    s_lshl_b32 s4, s4, 10
    s_add_u32 s4, s4, {WS_ACT}
    """)
    def scale_store(soff_expr, flags):
        n = 0
        for qh in range(2):
            for pg in range(2):
                a(soff_expr(qh, pg))
                for pp in range(4):
                    p = 4*pg + pp
                    rg = [O(2*p, qh) + r for r in range(4)] + [O(2*p + 1, qh) + r for r in range(4)]
                    for x in rg:
                        a(f"v_mul_f32 v{x}, v{x}, v{T+4+qh}")
                    D = SB[0] + 4*(n % 8); n += 1
                    for r in range(4):
                        a(f"v_cvt_pk_bf16_f32 v{D+r}, v{rg[2*r]}, v{rg[2*r+1]}")
                    a(f"buffer_store_dwordx4 {vr(D,4)}, v{V_RK}, {sr(SRD_WS,4)}, s5 offen offset:{pp*1024} {flags}")
    if FUSE:
        for qh in range(2):
            for p in range(8):
                rg = [O(2*p, qh) + r for r in range(4)] + [O(2*p + 1, qh) + r for r in range(4)]
                for x in rg:
                    a(f"v_mul_f32 v{x}, v{x}, v{T+4+qh}")
                for r in range(4):
                    a(f"v_cvt_pk_bf16_f32 v{CT(qh,p)+r}, v{rg[2*r]}, v{rg[2*r+1]}")
        a("s_branch K2_OUTPROJ")
    else:
        scale_store(lambda qh, pg: f"s_add_u32 s5, s4, {qh*184*1024 + pg*4096}", "")
        a("s_branch K2_DONE")
    a.label("K2_EPI_PART")
    for qh in range(2):
        a(f"v_rcp_f32 v{T+4+qh}, v{V_L+4*qh}")
        a(f"v_cmp_lt_f32 vcc, 0, v{V_L+4*qh}")
        a(f"v_sub_f32 v{T+6+qh}, 0, v{V_MN+4*qh}")
        a("s_nop 1")
        a(f"v_cndmask_b32 v{T+4+qh}, 0, v{T+4+qh}, vcc")
        a(f"v_cndmask_b32 v{T+6+qh}, v{V_NEG}, v{T+6+qh}, vcc")
    a(f"""
    s_lshl_b32 s7, s6, 2
    s_add_u32 s7, s7, s{S_W}
    s_lshl_b32 s4, s7, 14
    s_add_u32 s4, s4, {WS_PO}
    """)
    scale_store(lambda qh, pg: f"s_add_u32 s5, s4, {qh*8192 + pg*4096}", "sc1")
    a(f"""
    s_lshl_b32 s5, s7, 10
    s_add_u32 s5, s5, {WS_PS}
    v_lshlrev_b32 v{T+8}, 3, v{L}
    v_mov_b32 v{T+10}, v{T+6}
    v_mov_b32 v{T+11}, v{V_L}
    v_mov_b32 v{T+12}, v{T+7}
    v_mov_b32 v{T+13}, v{V_L+4}
    buffer_store_dwordx2 v[{T+10}:{T+11}], v{T+8}, {sr(SRD_WS,4)}, s5 offen sc1
    buffer_store_dwordx2 v[{T+12}:{T+13}], v{T+8}, {sr(SRD_WS,4)}, s5 offen offset:512 sc1
    s_waitcnt vmcnt(0)
    s_barrier
    s_cmp_lg_u32 s{S_W}, 0
    s_cbranch_scc1 K2_NOFLAG
    s_lshr_b32 s4, s6, 1
    s_lshl_b32 s4, s4, 2
    s_and_b32 s5, s6, 1
    s_lshl_b32 s5, s5, 4
    s_lshl_b32 s5, 1, s5
    v_mov_b32 v{T+8}, s4
    v_mov_b32 v{T+9}, s5
    v_cmp_eq_u32 vcc, 0, v{L}
    s_and_saveexec_b64 s[6:7], vcc
    buffer_atomic_add v{T+9}, v{T+8}, {sr(SRD_DBG,4)}, 0 offen
    s_mov_b64 exec, s[6:7]
    """)
    a.label("K2_NOFLAG")
    a.label("K2_SEG2")
    a(f"""
    s_mov_b32 s{S_LQ}, s{S_I}
    s_mov_b32 s{S_U0}, 0
    s_lshl_b32 s{S_N}, s{S_I}, 1
    s_add_u32 s{S_N}, s{S_N}, 2
    s_mov_b32 s{S_EK}, 1
    s_branch K2_SEG
    """)
    a.label("K2_EPI_MERGE")
    a(f"""
    s_lshr_b32 s4, s6, 1
    s_lshl_b32 s4, s4, 2
    s_and_b32 s5, s6, 1
    s_lshl_b32 s5, s5, 4
    v_mov_b32 v{T+8}, s4
    s_mov_b32 s7, 0x40000
    """)
    a.label("K2_POLL")
    a(f"""
    buffer_load_dword v{T+9}, v{T+8}, {sr(SRD_DBG,4)}, 0 offen sc1
    s_waitcnt vmcnt(0)
    v_readfirstlane_b32 s4, v{T+9}
    s_nop 3
    s_lshr_b32 s4, s4, s5
    s_and_b32 s4, s4, 0xffff
    s_cmp_lg_u32 s4, 0
    s_cbranch_scc1 K2_POLLED
    s_sleep 4
    s_sub_u32 s7, s7, 1
    s_cmp_lg_u32 s7, 0
    s_cbranch_scc1 K2_POLL
    """)
    a.label("K2_POLLED")
    a(f"""
    s_lshl_b32 s7, s6, 2
    s_add_u32 s7, s7, s{S_W}
    s_lshl_b32 s4, s7, 14
    s_add_u32 s4, s4, {WS_PO}
    s_lshl_b32 s5, s7, 10
    s_add_u32 s5, s5, {WS_PS}
    v_lshlrev_b32 v{T+8}, 3, v{L}
    buffer_load_dwordx2 v[{T+10}:{T+11}], v{T+8}, {sr(SRD_WS,4)}, s5 offen sc1
    buffer_load_dwordx2 v[{T+12}:{T+13}], v{T+8}, {sr(SRD_WS,4)}, s5 offen offset:512 sc1
    """)
    for qh in range(2):
        for pg in range(2):
            a(f"s_add_u32 s5, s4, {qh*8192 + pg*4096}")
            for pp in range(4):
                p = 4*pg + pp
                a(f"buffer_load_dwordx4 {vr(SB[0] + 4*(8*qh + p), 4)}, v{V_RK}, {sr(SRD_WS,4)}, s5 offen offset:{pp*1024} sc1")
    NX = 0
    if FUSE:
        outproj_issue(a)
        NX = 32
    a(f"s_waitcnt vmcnt({16 + NX})")
    for qh in range(2):
        mB, lB = T + 10 + 2*qh, T + 11 + 2*qh
        mA, wA, wB, dn = T + 3, T + 6, T + 7, T + 14
        a(f"""
        v_sub_f32 v{mA}, 0, v{V_MN+4*qh}
        v_max_f32 v{dn}, v{mA}, v{mB}
        v_sub_f32 v{wA}, v{mA}, v{dn}
        v_sub_f32 v{wB}, v{mB}, v{dn}
        v_exp_f32 v{wA}, v{wA}
        v_exp_f32 v{wB}, v{wB}
        s_nop 0
        v_mul_f32 v{wB}, v{wB}, v{lB}
        v_fma_f32 v{dn}, v{wA}, v{V_L+4*qh}, v{wB}
        v_rcp_f32 v{dn}, v{dn}
        s_nop 0
        v_mul_f32 v{dn}, v{dn}, v{T+1+qh}
        v_mul_f32 v{T+4+qh}, v{wA}, v{dn}
        v_mul_f32 v{mB}, v{wB}, v{dn}
        """)
    a(f"""
    s_lshl_b32 s4, s{S_LQ}, 3
    s_lshl_b32 s5, s{S_W}, 1
    s_add_u32 s4, s4, s5
    s_mul_i32 s4, s4, 184
    s_lshl_b32 s5, s{S_H}, 3
    s_add_u32 s4, s4, s5
    s_lshl_b32 s4, s4, 10
    s_add_u32 s4, s4, {WS_ACT}
    """)
    cnt = 0
    for qh in range(2):
        for pg in range(2):
            a(f"s_add_u32 s5, s4, {qh*184*1024 + pg*4096}")
            for pp in range(4):
                p = 4*pg + pp
                a(f"s_waitcnt vmcnt({15 - (8*qh + p) + cnt + NX})")
                src = SB[0] + 4*(8*qh + p)
                rg = [O(2*p, qh) + r for r in range(4)] + [O(2*p + 1, qh) + r for r in range(4)]
                for r in range(4):
                    a(f"v_lshlrev_b32 v{V_P+2*r}, 16, v{src+r}")
                    a(f"v_and_b32 v{V_P+2*r+1}, 0xffff0000, v{src+r}")
                for k, x in enumerate(rg):
                    a(f"v_mul_f32 v{x}, v{x}, v{T+4+qh}")
                for k, x in enumerate(rg):
                    a(f"v_fma_f32 v{x}, v{V_P+k}, v{T+10+2*qh}, v{x}")
                for r in range(4):
                    a(f"v_cvt_pk_bf16_f32 v{src+r}, v{rg[2*r]}, v{rg[2*r+1]}")
                if not FUSE:
                    a(f"buffer_store_dwordx4 {vr(src,4)}, v{V_RK}, {sr(SRD_WS,4)}, s5 offen offset:{pp*1024}")
                    cnt += 1
    if FUSE:
        a.label("K2_OUTPROJ")
        outproj_run(a, opts, T)
    a.label("K2_DONE")
    prof_end(a, opts, SRD_WS, 1, V_PROF, V_T)
    a.label("K2_END")
    a("s_endpgm")
    return name, kernel_desc(name, 512, 102, 256)
```

```python
from asmlib import *
from sched import *
import struct

GRID = 256
GRID_B = 448
NS = 5
SLOT = 28672
LDS = NS * SLOT
PT = 8 * 7 * 1024

S_W = 3
SRD_WO, SRD_WD, SRD_W, SRD_WS = 8, 12, 16, 20
S_QT, S_MQ, S_KS = 32, 33, 34
S_N1 = 35
S_NST = 36
S_WOFF = 37
S_AOFF = 38
S_LDST = 39
S_M0 = 40
S_A2, S_W2 = 41, 42
S_SC = 43
V_LANE, V_L16, V_RW, V_RW2, V_RW3 = 1, 2, 3, 16, 17
V_DW = 4
V_G = 20
V_AQ = 24
V_ACC = 32
V_WF = 144
A_AF = 0
MF = "v_mfma_f32_16x16x32_bf16"

def acc(i, qb): return V_ACC + 4*(4*i + qb)
def wf(st, i): return V_WF + 28*st + 4*i
def af(slot, p, qb): return A_AF + 32*slot + 16*p + 4*qb

def w_reads(st, slot, p):
    base = [V_RW, V_RW, V_RW2, V_RW2, V_RW3][slot]
    off = (slot % 2) * SLOT
    out = []
    for i in range(7):
        for r2 in range(2):
            out.append((f"ds_read_b64_tr_b16 {vr(wf(st,i)+2*r2,2)}, v{base} offset:{off + (32*p + 16*r2)*224 + 32*i}", ('rd', (st, i, r2))))
    return out

def load_stage(slot):
    W = []
    for j in range(7):
        W.append((f"s_add_u32 m0, s{S_M0}, {slot*SLOT + j*4096}", f"buffer_load_dwordx4 v{V_DW+j}, {sr(SRD_W,4)}, s{S_WOFF} offen lds"))
    A = []
    for p in range(2):
        for qb in range(4):
            A.append(f"buffer_load_dwordx4 {ar(af(slot,p,qb),4)}, v{V_AQ+qb}, {sr(SRD_WS,4)}, s{S_AOFF} offen offset:{p*1024}")
    return W, A

def advance():
    return [f"s_add_u32 s{S_LDST}, s{S_LDST}, 1\ns_add_u32 s{S_WOFF}, s{S_WOFF}, {128*896}",
            f"s_add_u32 s{S_AOFF}, s{S_AOFF}, 4096",
            f"""s_cmp_eq_u32 s{S_LDST}, s{S_N1}
            s_cselect_b32 s{S_WOFF}, s{S_W2}, s{S_WOFF}
            s_cselect_b32 s{S_AOFF}, s{S_A2}, s{S_AOFF}
            s_cselect_b32 s{SRD_W}, s{SRD_WO}, s{SRD_W}
            s_cselect_b32 s{SRD_W+1}, s{SRD_WO+1}, s{SRD_W+1}
            s_cselect_b32 s{SRD_W+2}, s{SRD_WO+2}, s{SRD_W+2}""",
            f"""s_cmp_lt_u32 s{S_LDST}, s{S_NST}
            s_cselect_b32 s{SRD_W+2}, s{SRD_W+2}, 0
            s_cselect_b32 s{SRD_WS+6}, s{SRD_WS+6}, 0"""]

def gen_k3(a, opts):
    name = "k3_out_kernel"
    L = V_LANE
    SRD_A = SRD_WS + 4
    a.raw(kernel_header(name))
    a(f"s_cmp_ge_u32 s2, {GRID}\ns_cbranch_scc1 K3_END")
    shuffle_id(a, opts)
    a(f"""
    s_load_dwordx2 s[44:45], s[0:1], 40
    s_load_dwordx2 s[46:47], s[0:1], 72
    s_load_dwordx2 s[52:53], s[0:1], 104
    v_lshrrev_b32 v2, 6, v0
    v_and_b32 v{L}, 63, v0
    s_nop 0
    v_readfirstlane_b32 s{S_W}, v2
    """)
    if opts.get('cpf', 1):
        code_prefetch(a, None, 'K3_END', 32*1024, 48, 12, 0, 11)
    stamp(a, opts, 0, 15)
    a(f"""
    s_and_b32 s4, s2, 7
    s_lshr_b32 s5, s2, 3
    s_lshr_b32 s{S_KS}, s4, 1
    s_and_b32 s4, s4, 1
    s_lshl_b32 s4, s4, 3
    s_lshr_b32 s6, s5, 2
    s_add_u32 s{S_QT}, s4, s6
    s_and_b32 s{S_MQ}, s5, 3
    s_waitcnt lgkmcnt(0)
    s_mov_b32 s{SRD_WO}, s44
    s_mov_b32 s{SRD_WO+1}, s45
    s_mov_b32 s{SRD_WO+2}, {4096*896}
    s_mov_b32 s{SRD_WO+3}, 0x20000
    s_mov_b32 s{SRD_WD}, s46
    s_mov_b32 s{SRD_WD+1}, s47
    s_mov_b32 s{SRD_WD+2}, {1792*896}
    s_mov_b32 s{SRD_WD+3}, 0x20000
    s_mov_b32 s{SRD_WS}, s52
    s_mov_b32 s{SRD_WS+1}, s53
    s_mov_b32 s{SRD_WS+2}, {WS_SIZE}
    s_mov_b32 s{SRD_WS+3}, 0x20000
    s_mov_b32 s{SRD_A}, s52
    s_mov_b32 s{SRD_A+1}, s53
    s_mov_b32 s{SRD_A+2}, {WS_SIZE}
    s_mov_b32 s{SRD_A+3}, 0x20000
    """)
    a(f"""
    s_cmp_lt_u32 s{S_KS}, 2
    s_cselect_b32 s{S_NST}, 12, 11
    s_mov_b32 s{S_N1}, 0
    s_cmp_eq_u32 s{S_KS}, 2
    s_cselect_b32 s{S_N1}, 3, s{S_N1}
    s_cmp_eq_u32 s{S_KS}, 3
    s_cselect_b32 s{S_N1}, 11, s{S_N1}
    s_mul_i32 s4, s{S_KS}, 48
    s_mul_i32 s{S_W2}, s4, {32*896}
    s_lshl_b32 s{S_A2}, s4, 10
    s_movk_i32 s5, 128
    s_cmp_eq_u32 s{S_KS}, 3
    s_cselect_b32 s5, 140, s5
    s_cmp_lt_u32 s{S_KS}, 2
    s_cselect_b32 s5, s4, s5
    s_lshl_b32 s{S_AOFF}, s5, 10
    s_sub_u32 s6, s5, 128
    s_cmp_lt_u32 s{S_KS}, 2
    s_cselect_b32 s6, s5, s6
    s_mul_i32 s{S_WOFF}, s6, {32*896}
    s_cselect_b32 s{SRD_W}, s{SRD_WO}, s{SRD_WD}
    s_cselect_b32 s{SRD_W+1}, s{SRD_WO+1}, s{SRD_WD+1}
    s_cselect_b32 s{SRD_W+2}, s{SRD_WO+2}, s{SRD_WD+2}
    s_mov_b32 s{SRD_W+3}, 0x20000
    s_mov_b32 s{S_LDST}, 0
    s_lshl_b32 s{S_M0}, s{S_W}, 10
    """)
    a(f"""
    v_lshlrev_b32 v{V_L16}, 4, v{L}
    s_and_b32 s6, s{S_W}, 1
    s_lshr_b32 s7, s{S_W}, 1
    s_lshl_b32 s4, s{S_QT}, 3
    s_lshl_b32 s5, s6, 2
    s_add_u32 s4, s4, s5
    s_mul_i32 s4, s4, {184*1024}
    s_add_u32 s4, s4, {WS_ACT}
    s_lshl_b32 s5, s7, 11
    s_add_u32 s4, s4, s5
    v_add_u32 v{V_AQ}, s4, v{V_L16}
    """)
    for qb in range(1, 4):
        a(f"v_add_u32 v{V_AQ+qb}, {184*1024}, v{V_AQ+qb-1}")
    a(f"""
    s_lshl_b32 s4, s{S_W}, 10
    v_add_u32 v12, s4, v{V_L16}
    s_mov_b32 s5, {(1 << 32) // 224 + 1}
    v_mul_hi_u32 v13, v12, s5
    v_mul_u32_u24 v14, 224, v13
    v_sub_u32 v14, v12, v14
    v_mul_u32_u24 v13, 896, v13
    s_mul_i32 s5, s{S_MQ}, 224
    v_add3_u32 v{V_DW}, v13, v14, s5
    """)
    for j in range(1, 7):
        a(f"""
        v_add_u32 v14, 64, v14
        v_cmp_le_u32 vcc, 224, v14
        v_add_u32 v{V_DW+j}, {18*896 + 64}, v{V_DW+j-1}
        v_subrev_u32 v13, 224, v14
        v_cndmask_b32 v14, v14, v13, vcc
        v_add_u32 v13, {896 - 224}, v{V_DW+j}
        v_cndmask_b32 v{V_DW+j}, v{V_DW+j}, v13, vcc
        """)
    a(f"""
    v_lshrrev_b32 v12, 2, v{L}
    s_lshl_b32 s4, s7, 6
    v_add_u32 v12, s4, v12
    v_mul_u32_u24 v12, 224, v12
    v_and_b32 v13, 3, v{L}
    v_lshl_add_u32 v{V_RW}, v13, 3, v12
    v_add_u32 v{V_RW2}, {2*SLOT}, v{V_RW}
    v_add_u32 v{V_RW3}, {4*SLOT}, v{V_RW}
    """)
    a(f"""
    s_lshl_b32 s4, s{S_QT}, 7
    s_lshl_b32 s5, s6, 6
    s_add_u32 s4, s4, s5
    v_and_b32 v12, 15, v{L}
    v_add_u32 v12, s4, v12
    v_lshlrev_b32 v12, 2, v12
    s_mov_b32 s4, {WS_G}
    """)
    for qb in range(4):
        a(f"buffer_load_dword v{V_G+qb}, v12, {sr(SRD_WS,4)}, s4 offen offset:{64*qb}")
    PRE = NS - 1
    saved = SRD_WS

    def fix(txt):
        return txt
    global load_stage_A
    def stage_ops(slot):
        W, A = load_stage(slot)
        A = [x.replace(sr(SRD_WS, 4), sr(SRD_A, 4)) for x in A]
        return W, A
    adv = [x.replace(f"s{SRD_WS+6}", f"s{SRD_A+2}") for x in advance()]
    for s in range(PRE):
        W, A = stage_ops(s)
        for m0, ld in W:
            a(m0); a("s_nop 0"); a(ld)
        for ins in A: a(ins)
        for ins in adv: a(ins)
    for r in range(112): a(f"v_mov_b32 v{V_ACC+r}, 0")
    a(f"s_waitcnt vmcnt({15*(PRE-1)})")
    for qb in range(4):
        a(f"v_sub_f32 v{V_G+qb}, 1.0, v{V_G+qb}")
    a("s_barrier")
    for ins, _ in w_reads(0, 0, 0): a(ins)
    stamp(a, opts, 1, 15)
    if opts.get('prof'):
        for ins, _ in w_reads(0, 0, 0): a(ins)
    a(f"s_mov_b32 s{S_SC}, 0")
    a.label("K3_LOOP")
    for s in range(NS):
        nx = (s + 1) % NS
        ld = (s + PRE) % NS
        ms = []
        for p in range(2):
            for i in range(7):
                for qb in range(4):
                    ms.append((f"{MF} {vr(acc(i,qb),4)}, {vr(wf(p,i),4)}, {ar(af(s,p,qb),4)}, {vr(acc(i,qb),4)}", [(p, i, 0), (p, i, 1)]))
        sc = Sched(ms, 2)
        for k, (ins, meta) in enumerate(w_reads(1, s, 1)):
            sc.put(1 + k * 22 // 14, ins, 1, meta)
        sc.put(27, f"s_waitcnt vmcnt({15*(PRE-2)+8}) lgkmcnt(0)", 1, ('drain',), force=True)
        sc.put(27, "s_barrier", 1, None, force=True)
        for k, (ins, meta) in enumerate(w_reads(0, nx, 0)):
            sc.put(28 + k * 20 // 14, ins, 1, meta)
        W, A = stage_ops(ld)
        slot = 28
        for m0, ldi in W:
            slot = sc.put(slot, m0, 1) + 1
            slot = sc.put(slot, ldi, 1, None, force=True)
        slot = 2
        for ins in A:
            slot = sc.put(slot, ins, 1) + 3
        slot = 46
        for ins in adv:
            slot = sc.put(slot, ins, 1, None, force=True) + 2
        carried = [(0, i, r2) for i in range(7) for r2 in range(2)]
        body, out, nw = insert_lgkm_waits(sc.flat(), carried, 4)
        assert out == carried, out
        for ins in body: a(ins)
        a(f"""
        s_add_u32 s{S_SC}, s{S_SC}, 1
        s_cmp_lg_u32 s{S_SC}, s{S_N1}
        s_cbranch_scc1 K3_NOSC{s}
        s_nop 7
        """)
        for i in range(7):
            for qb in range(4):
                for r in range(4):
                    a(f"v_mul_f32 v{acc(i,qb)+r}, v{acc(i,qb)+r}, v{V_G+qb}")
        a("s_nop 1")
        a.label(f"K3_NOSC{s}")
        a(f"s_cmp_eq_u32 s{S_SC}, s{S_NST}\ns_cbranch_scc1 K3_RED")
    a("s_branch K3_LOOP")
    a.label("K3_RED")
    stamp(a, opts, 2, 15)
    a(f"""
    s_waitcnt vmcnt(0) lgkmcnt(0)
    s_barrier
    s_nop 4
    s_mul_i32 s4, s{S_W}, {14*1024}
    v_add_u32 v12, s4, v{V_L16}
    s_xor_b32 s5, s{S_W}, 2
    s_mul_i32 s5, s5, {14*1024}
    v_add_u32 v13, s5, v{V_L16}
    s_lshr_b32 s7, s{S_W}, 1
    s_cmp_eq_u32 s7, 0
    s_cbranch_scc0 K3_KH1
    """)
    for half, lbl in ((0, None), (1, "K3_KH1")):
        if lbl: a.label(lbl)
        keep = range(14*half, 14*half + 14)
        send = range(14*(1-half), 14*(1-half) + 14)
        for k, t in enumerate(send):
            a(f"ds_write_b128 v12, {vr(V_ACC+4*t,4)} offset:{k*1024}")
        a("s_waitcnt lgkmcnt(0)\ns_barrier")
        for k, t in enumerate(keep):
            a(f"ds_read_b128 {vr(V_WF+4*k,4)}, v13 offset:{k*1024}")
        a(f"""
        s_lshl_b32 s4, s{S_QT}, 2
        s_add_u32 s4, s4, s{S_MQ}
        s_lshl_b32 s4, s4, 2
        s_add_u32 s4, s4, s{S_KS}
        s_mul_i32 s4, s4, {PT}
        s_and_b32 s5, s{S_W}, 1
        s_mul_i32 s5, s5, {4*7*1024}
        s_add_u32 s4, s4, s5
        s_add_u32 s4, s4, {WS_P3}
        """)
        for k, t in enumerate(keep):
            a(f"s_waitcnt lgkmcnt({13-k})")
            for r in range(4):
                a(f"v_add_f32 v{V_ACC+4*t+r}, v{V_ACC+4*t+r}, v{V_WF+4*k+r}")
            i, qb = t // 4, t % 4
            a(f"s_add_u32 s5, s4, {(qb*7 + i)*1024}")
            a(f"buffer_store_dwordx4 {vr(V_ACC+4*t,4)}, v{V_L16}, {sr(SRD_WS,4)}, s5 offen")
        if half == 0:
            a("s_branch K3_DONE")
    a.label("K3_DONE")
    prof_end(a, opts, SRD_WS, 2, 15, 12)
    a.label("K3_END")
    a("s_endpgm")
    return name, kernel_desc(name, 256 + 32*NS, 102, 256)

def gen_k3b(a, opts):
    name = "k4_red_kernel"
    a.raw(kernel_header(name))
    a(f"""
    s_cmp_ge_u32 s2, {GRID_B}
    s_cbranch_scc1 K4_END
    s_load_dwordx2 s[4:5], s[0:1], 88
    s_load_dwordx2 s[6:7], s[0:1], 104
    v_lshrrev_b32 v2, 6, v0
    v_and_b32 v1, 63, v0
    s_nop 0
    v_readfirstlane_b32 s3, v2
    s_waitcnt lgkmcnt(0)
    s_mov_b32 s8, s4
    s_mov_b32 s9, s5
    s_mov_b32 s10, {2048*896}
    s_mov_b32 s11, 0x20000
    s_mov_b32 s12, s6
    s_mov_b32 s13, s7
    s_mov_b32 s14, {WS_SIZE}
    s_mov_b32 s15, 0x20000
    s_mul_hi_u32 s16, s2, {(1 << 32) // 7 + 1}
    s_mul_i32 s17, s16, 7
    s_sub_u32 s17, s2, s17
    s_mul_i32 s18, s16, {4*PT}
    s_mul_i32 s19, s3, {14*1024}
    s_add_u32 s18, s18, s19
    s_lshl_b32 s19, s17, 10
    s_add_u32 s18, s18, s19
    s_add_u32 s18, s18, {WS_P3}
    v_lshlrev_b32 v3, 4, v1
    """)
    for sp in range(4):
        a(f"s_add_u32 s19, s18, {sp*PT}")
        a(f"buffer_load_dwordx4 {vr(8+8*sp,4)}, v3, s[12:15], s19 offen")
        a(f"s_add_u32 s19, s19, {7*1024}")
        a(f"buffer_load_dwordx4 {vr(12+8*sp,4)}, v3, s[12:15], s19 offen")
    a(f"""
    s_lshr_b32 s20, s16, 2
    s_and_b32 s21, s16, 3
    s_lshl_b32 s20, s20, 7
    s_lshl_b32 s22, s3, 5
    s_add_u32 s20, s20, s22
    v_and_b32 v4, 15, v1
    v_bfe_u32 v5, v1, 4, 1
    v_lshl_add_u32 v4, v5, 4, v4
    v_add_u32 v4, s20, v4
    v_mul_u32_u24 v4, 896, v4
    v_lshrrev_b32 v5, 5, v1
    v_lshl_add_u32 v4, v5, 4, v4
    s_mul_i32 s21, s21, 224
    s_lshl_b32 s22, s17, 5
    s_add_u32 s21, s21, s22
    v_add_u32 v4, s21, v4
    s_waitcnt vmcnt(0)
    """)
    for r in range(8):
        a(f"v_add_f32 v{8+r}, v{8+r}, v{16+r}")
        a(f"v_add_f32 v{24+r}, v{24+r}, v{32+r}")
    for r in range(8):
        a(f"v_add_f32 v{8+r}, v{8+r}, v{24+r}")
    a("""
    v_cvt_pk_bf16_f32 v40, v8, v9
    v_cvt_pk_bf16_f32 v41, v10, v11
    v_cvt_pk_bf16_f32 v42, v12, v13
    v_cvt_pk_bf16_f32 v43, v14, v15
    s_nop 1
    v_permlane16_swap_b32 v40, v42
    v_permlane16_swap_b32 v41, v43
    buffer_store_dwordx4 v[40:43], v4, s[8:11], 0 offen
    """)
    a.label("K4_END")
    a("s_endpgm")
    return name, kernel_desc(name, 48, 32, 48)


def gen_k4f(a, opts):
    name = "k4_red_kernel"
    a.raw(kernel_header(name))
    a(f"""
    s_cmp_ge_u32 s2, {GRID_B}
    s_cbranch_scc1 K4_END
    s_load_dwordx2 s[4:5], s[0:1], 88
    s_load_dwordx2 s[6:7], s[0:1], 104
    v_lshrrev_b32 v2, 6, v0
    v_and_b32 v1, 63, v0
    s_nop 0
    v_readfirstlane_b32 s3, v2
    v_lshlrev_b32 v3, 4, v1
    s_lshl_b32 s16, s2, 2
    s_add_u32 s16, s16, s3
    s_lshl_b32 s18, s16, 14
    s_add_u32 s18, s18, {WS_P3}
    s_mov_b32 s14, {WS_SIZE}
    s_mov_b32 s15, 0x20000
    s_waitcnt lgkmcnt(0)
    s_mov_b32 s12, s6
    s_mov_b32 s13, s7
    """)
    for h in range(16):
        if h and h % 4 == 0:
            a("s_add_u32 s18, s18, 4096")
        a(f"buffer_load_dwordx4 {vr(16+4*h,4)}, v3, s[12:15], s18 offen offset:{(h%4)*1024}")
    a(f"""
    s_mov_b32 s8, s4
    s_mov_b32 s9, s5
    s_mov_b32 s10, {2048*896}
    s_mov_b32 s11, 0x20000
    s_mul_hi_u32 s17, s16, {(1 << 32) // 28 + 1}
    s_mul_i32 s19, s17, 28
    s_sub_u32 s19, s16, s19
    s_lshl_b32 s20, s17, 5
    v_and_b32 v4, 15, v1
    v_bfe_u32 v5, v1, 4, 1
    v_lshl_add_u32 v4, v5, 4, v4
    v_add_u32 v4, s20, v4
    v_mul_u32_u24 v4, 896, v4
    v_lshrrev_b32 v5, 5, v1
    v_lshl_add_u32 v4, v5, 4, v4
    s_lshl_b32 s22, s19, 5
    v_add_u32 v4, s22, v4
    """)
    for r in range(8): a(f"v_mov_b32 v{8+r}, 0")
    for h in range(16):
        a(f"s_waitcnt vmcnt({15-h})")
        for r in range(4):
            x = 16 + 4*h + r
            a(f"v_lshlrev_b32 v6, 16, v{x}")
            a(f"v_and_b32 v7, 0xffff0000, v{x}")
            a(f"v_add_f32 v{8+2*r}, v{8+2*r}, v6")
            a(f"v_add_f32 v{8+2*r+1}, v{8+2*r+1}, v7")
    a("""
    v_cvt_pk_bf16_f32 v80, v8, v9
    v_cvt_pk_bf16_f32 v81, v10, v11
    v_cvt_pk_bf16_f32 v82, v12, v13
    v_cvt_pk_bf16_f32 v83, v14, v15
    s_nop 1
    v_permlane16_swap_b32 v80, v82
    v_permlane16_swap_b32 v81, v83
    buffer_store_dwordx4 v[80:83], v4, s[8:11], 0 offen
    """)
    a.label("K4_END")
    a("s_endpgm")
    return name, kernel_desc(name, 88, 32, 88)
```

```python
from asmlib import *
from sched import *
import struct

GRID = 256
GRID_B = 448
NS = 5
SLOT = 28672
LDS = NS * SLOT
PT = 8 * 7 * 1024

S_W = 3
SRD_WO, SRD_WD, SRD_W, SRD_WS = 8, 12, 16, 20
S_QT, S_MQ, S_KS = 32, 33, 34
S_N1 = 35
S_NST = 36
S_WOFF = 37
S_AOFF = 38
S_LDST = 39
S_M0 = 40
S_A2, S_W2 = 41, 42
S_SC = 43
V_LANE, V_L16, V_RW, V_RW2, V_RW3 = 1, 2, 3, 16, 17
V_DW = 4
V_G = 20
V_AQ = 24
V_ACC = 32
V_WF = 144
A_AF = 0
MF = "v_mfma_f32_16x16x32_bf16"

def acc(i, qb): return V_ACC + 4*(4*i + qb)
def wf(st, i): return V_WF + 28*st + 4*i
def af(slot, p, qb): return A_AF + 32*slot + 16*p + 4*qb

def w_reads(st, slot, p):
    base = [V_RW, V_RW, V_RW2, V_RW2, V_RW3][slot]
    off = (slot % 2) * SLOT
    out = []
    for i in range(7):
        for r2 in range(2):
            out.append((f"ds_read_b64_tr_b16 {vr(wf(st,i)+2*r2,2)}, v{base} offset:{off + (32*p + 16*r2)*224 + 32*i}", ('rd', (st, i, r2))))
    return out

def load_stage(slot):
    W = []
    for j in range(7):
        W.append((f"s_add_u32 m0, s{S_M0}, {slot*SLOT + j*4096}", f"buffer_load_dwordx4 v{V_DW+j}, {sr(SRD_W,4)}, s{S_WOFF} offen lds"))
    A = []
    for p in range(2):
        for qb in range(4):
            A.append(f"buffer_load_dwordx4 {ar(af(slot,p,qb),4)}, v{V_AQ+qb}, {sr(SRD_WS,4)}, s{S_AOFF} offen offset:{p*1024}")
    return W, A

def advance():
    return [f"s_add_u32 s{S_LDST}, s{S_LDST}, 1\ns_add_u32 s{S_WOFF}, s{S_WOFF}, {128*896}",
            f"s_add_u32 s{S_AOFF}, s{S_AOFF}, 4096",
            f"""s_cmp_eq_u32 s{S_LDST}, s{S_N1}
            s_cselect_b32 s{S_WOFF}, s{S_W2}, s{S_WOFF}
            s_cselect_b32 s{S_AOFF}, s{S_A2}, s{S_AOFF}
            s_cselect_b32 s{SRD_W}, s{SRD_WO}, s{SRD_W}
            s_cselect_b32 s{SRD_W+1}, s{SRD_WO+1}, s{SRD_W+1}
            s_cselect_b32 s{SRD_W+2}, s{SRD_WO+2}, s{SRD_W+2}""",
            f"""s_cmp_lt_u32 s{S_LDST}, s{S_NST}
            s_cselect_b32 s{SRD_W+2}, s{SRD_W+2}, 0
            s_cselect_b32 s{SRD_WS+6}, s{SRD_WS+6}, 0"""]

def gen_k3(a, opts):
    name = "k3_out_kernel"
    L = V_LANE
    SRD_A = SRD_WS + 4
    a.raw(kernel_header(name))
    a(f"s_cmp_ge_u32 s2, {GRID}\ns_cbranch_scc1 K3_END")
    shuffle_id(a, opts)
    a(f"""
    s_load_dwordx2 s[44:45], s[0:1], 40
    s_load_dwordx2 s[46:47], s[0:1], 72
    s_load_dwordx2 s[52:53], s[0:1], 104
    v_lshrrev_b32 v2, 6, v0
    v_and_b32 v{L}, 63, v0
    s_nop 0
    v_readfirstlane_b32 s{S_W}, v2
    """)
    if opts.get('cpf', 1):
        code_prefetch(a, None, 'K3_END', 32*1024, 48, 12, 0, 11)
    stamp(a, opts, 0, 15)
    a(f"""
    s_and_b32 s4, s2, 7
    s_lshr_b32 s5, s2, 3
    s_lshr_b32 s{S_KS}, s4, 1
    s_and_b32 s4, s4, 1
    s_lshl_b32 s4, s4, 3
    s_lshr_b32 s6, s5, 2
    s_add_u32 s{S_QT}, s4, s6
    s_and_b32 s{S_MQ}, s5, 3
    s_waitcnt lgkmcnt(0)
    s_mov_b32 s{SRD_WO}, s44
    s_mov_b32 s{SRD_WO+1}, s45
    s_mov_b32 s{SRD_WO+2}, {4096*896}
    s_mov_b32 s{SRD_WO+3}, 0x20000
    s_mov_b32 s{SRD_WD}, s46
    s_mov_b32 s{SRD_WD+1}, s47
    s_mov_b32 s{SRD_WD+2}, {1792*896}
    s_mov_b32 s{SRD_WD+3}, 0x20000
    s_mov_b32 s{SRD_WS}, s52
    s_mov_b32 s{SRD_WS+1}, s53
    s_mov_b32 s{SRD_WS+2}, {WS_SIZE}
    s_mov_b32 s{SRD_WS+3}, 0x20000
    s_mov_b32 s{SRD_A}, s52
    s_mov_b32 s{SRD_A+1}, s53
    s_mov_b32 s{SRD_A+2}, {WS_SIZE}
    s_mov_b32 s{SRD_A+3}, 0x20000
    """)
    a(f"""
    s_cmp_lt_u32 s{S_KS}, 2
    s_cselect_b32 s{S_NST}, 12, 11
    s_mov_b32 s{S_N1}, 0
    s_cmp_eq_u32 s{S_KS}, 2
    s_cselect_b32 s{S_N1}, 3, s{S_N1}
    s_cmp_eq_u32 s{S_KS}, 3
    s_cselect_b32 s{S_N1}, 11, s{S_N1}
    s_mul_i32 s4, s{S_KS}, 48
    s_mul_i32 s{S_W2}, s4, {32*896}
    s_lshl_b32 s{S_A2}, s4, 10
    s_movk_i32 s5, 128
    s_cmp_eq_u32 s{S_KS}, 3
    s_cselect_b32 s5, 140, s5
    s_cmp_lt_u32 s{S_KS}, 2
    s_cselect_b32 s5, s4, s5
    s_lshl_b32 s{S_AOFF}, s5, 10
    s_sub_u32 s6, s5, 128
    s_cmp_lt_u32 s{S_KS}, 2
    s_cselect_b32 s6, s5, s6
    s_mul_i32 s{S_WOFF}, s6, {32*896}
    s_cselect_b32 s{SRD_W}, s{SRD_WO}, s{SRD_WD}
    s_cselect_b32 s{SRD_W+1}, s{SRD_WO+1}, s{SRD_WD+1}
    s_cselect_b32 s{SRD_W+2}, s{SRD_WO+2}, s{SRD_WD+2}
    s_mov_b32 s{SRD_W+3}, 0x20000
    s_mov_b32 s{S_LDST}, 0
    s_lshl_b32 s{S_M0}, s{S_W}, 10
    """)
    a(f"""
    v_lshlrev_b32 v{V_L16}, 4, v{L}
    s_and_b32 s6, s{S_W}, 1
    s_lshr_b32 s7, s{S_W}, 1
    s_lshl_b32 s4, s{S_QT}, 3
    s_lshl_b32 s5, s6, 2
    s_add_u32 s4, s4, s5
    s_mul_i32 s4, s4, {184*1024}
    s_add_u32 s4, s4, {WS_ACT}
    s_lshl_b32 s5, s7, 11
    s_add_u32 s4, s4, s5
    v_add_u32 v{V_AQ}, s4, v{V_L16}
    """)
    for qb in range(1, 4):
        a(f"v_add_u32 v{V_AQ+qb}, {184*1024}, v{V_AQ+qb-1}")
    a(f"""
    s_lshl_b32 s4, s{S_W}, 10
    v_add_u32 v12, s4, v{V_L16}
    s_mov_b32 s5, {(1 << 32) // 224 + 1}
    v_mul_hi_u32 v13, v12, s5
    v_mul_u32_u24 v14, 224, v13
    v_sub_u32 v14, v12, v14
    v_mul_u32_u24 v13, 896, v13
    s_mul_i32 s5, s{S_MQ}, 224
    v_add3_u32 v{V_DW}, v13, v14, s5
    """)
    for j in range(1, 7):
        a(f"""
        v_add_u32 v14, 64, v14
        v_cmp_le_u32 vcc, 224, v14
        v_add_u32 v{V_DW+j}, {18*896 + 64}, v{V_DW+j-1}
        v_subrev_u32 v13, 224, v14
        v_cndmask_b32 v14, v14, v13, vcc
        v_add_u32 v13, {896 - 224}, v{V_DW+j}
        v_cndmask_b32 v{V_DW+j}, v{V_DW+j}, v13, vcc
        """)
    a(f"""
    v_lshrrev_b32 v12, 2, v{L}
    s_lshl_b32 s4, s7, 6
    v_add_u32 v12, s4, v12
    v_mul_u32_u24 v12, 224, v12
    v_and_b32 v13, 3, v{L}
    v_lshl_add_u32 v{V_RW}, v13, 3, v12
    v_add_u32 v{V_RW2}, {2*SLOT}, v{V_RW}
    v_add_u32 v{V_RW3}, {4*SLOT}, v{V_RW}
    """)
    a(f"""
    s_lshl_b32 s4, s{S_QT}, 7
    s_lshl_b32 s5, s6, 6
    s_add_u32 s4, s4, s5
    v_and_b32 v12, 15, v{L}
    v_add_u32 v12, s4, v12
    v_lshlrev_b32 v12, 2, v12
    s_mov_b32 s4, {WS_G}
    """)
    for qb in range(4):
        a(f"buffer_load_dword v{V_G+qb}, v12, {sr(SRD_WS,4)}, s4 offen offset:{64*qb}")
    PRE = NS - 1
    saved = SRD_WS

    def fix(txt):
        return txt
    global load_stage_A
    def stage_ops(slot):
        W, A = load_stage(slot)
        A = [x.replace(sr(SRD_WS, 4), sr(SRD_A, 4)) for x in A]
        return W, A
    adv = [x.replace(f"s{SRD_WS+6}", f"s{SRD_A+2}") for x in advance()]
    for s in range(PRE):
        W, A = stage_ops(s)
        for m0, ld in W:
            a(m0); a("s_nop 0"); a(ld)
        for ins in A: a(ins)
        for ins in adv: a(ins)
    for r in range(112): a(f"v_mov_b32 v{V_ACC+r}, 0")
    a(f"s_waitcnt vmcnt({15*(PRE-1)})")
    for qb in range(4):
        a(f"v_sub_f32 v{V_G+qb}, 1.0, v{V_G+qb}")
    a("s_barrier")
    for ins, _ in w_reads(0, 0, 0): a(ins)
    stamp(a, opts, 1, 15)
    if opts.get('prof'):
        for ins, _ in w_reads(0, 0, 0): a(ins)
    a(f"s_mov_b32 s{S_SC}, 0")
    a.label("K3_LOOP")
    for s in range(NS):
        nx = (s + 1) % NS
        ld = (s + PRE) % NS
        ms = []
        for p in range(2):
            for i in range(7):
                for qb in range(4):
                    ms.append((f"{MF} {vr(acc(i,qb),4)}, {vr(wf(p,i),4)}, {ar(af(s,p,qb),4)}, {vr(acc(i,qb),4)}", [(p, i, 0), (p, i, 1)]))
        sc = Sched(ms, 2)
        for k, (ins, meta) in enumerate(w_reads(1, s, 1)):
            sc.put(1 + k * 22 // 14, ins, 1, meta)
        sc.put(27, f"s_waitcnt vmcnt({15*(PRE-2)+8}) lgkmcnt(0)", 1, ('drain',), force=True)
        sc.put(27, "s_barrier", 1, None, force=True)
        for k, (ins, meta) in enumerate(w_reads(0, nx, 0)):
            sc.put(28 + k * 20 // 14, ins, 1, meta)
        W, A = stage_ops(ld)
        slot = 28
        for m0, ldi in W:
            slot = sc.put(slot, m0, 1) + 1
            slot = sc.put(slot, ldi, 1, None, force=True)
        slot = 2
        for ins in A:
            slot = sc.put(slot, ins, 1) + 3
        slot = 46
        for ins in adv:
            slot = sc.put(slot, ins, 1, None, force=True) + 2
        carried = [(0, i, r2) for i in range(7) for r2 in range(2)]
        body, out, nw = insert_lgkm_waits(sc.flat(), carried, 4)
        assert out == carried, out
        for ins in body: a(ins)
        a(f"""
        s_add_u32 s{S_SC}, s{S_SC}, 1
        s_cmp_lg_u32 s{S_SC}, s{S_N1}
        s_cbranch_scc1 K3_NOSC{s}
        s_nop 7
        """)
        for i in range(7):
            for qb in range(4):
                for r in range(4):
                    a(f"v_mul_f32 v{acc(i,qb)+r}, v{acc(i,qb)+r}, v{V_G+qb}")
        a("s_nop 1")
        a.label(f"K3_NOSC{s}")
        a(f"s_cmp_eq_u32 s{S_SC}, s{S_NST}\ns_cbranch_scc1 K3_RED")
    a("s_branch K3_LOOP")
    a.label("K3_RED")
    stamp(a, opts, 2, 15)
    a(f"""
    s_waitcnt vmcnt(0) lgkmcnt(0)
    s_barrier
    s_nop 4
    s_mul_i32 s4, s{S_W}, {14*1024}
    v_add_u32 v12, s4, v{V_L16}
    s_xor_b32 s5, s{S_W}, 2
    s_mul_i32 s5, s5, {14*1024}
    v_add_u32 v13, s5, v{V_L16}
    s_lshr_b32 s7, s{S_W}, 1
    s_cmp_eq_u32 s7, 0
    s_cbranch_scc0 K3_KH1
    """)
    for half, lbl in ((0, None), (1, "K3_KH1")):
        if lbl: a.label(lbl)
        keep = range(14*half, 14*half + 14)
        send = range(14*(1-half), 14*(1-half) + 14)
        for k, t in enumerate(send):
            a(f"ds_write_b128 v12, {vr(V_ACC+4*t,4)} offset:{k*1024}")
        a("s_waitcnt lgkmcnt(0)\ns_barrier")
        for k, t in enumerate(keep):
            a(f"ds_read_b128 {vr(V_WF+4*k,4)}, v13 offset:{k*1024}")
        a(f"""
        s_lshl_b32 s4, s{S_QT}, 2
        s_add_u32 s4, s4, s{S_MQ}
        s_lshl_b32 s4, s4, 2
        s_add_u32 s4, s4, s{S_KS}
        s_mul_i32 s4, s4, {PT}
        s_and_b32 s5, s{S_W}, 1
        s_mul_i32 s5, s5, {4*7*1024}
        s_add_u32 s4, s4, s5
        s_add_u32 s4, s4, {WS_P3}
        """)
        for k, t in enumerate(keep):
            a(f"s_waitcnt lgkmcnt({13-k})")
            for r in range(4):
                a(f"v_add_f32 v{V_ACC+4*t+r}, v{V_ACC+4*t+r}, v{V_WF+4*k+r}")
            i, qb = t // 4, t % 4
            a(f"s_add_u32 s5, s4, {(qb*7 + i)*1024}")
            a(f"buffer_store_dwordx4 {vr(V_ACC+4*t,4)}, v{V_L16}, {sr(SRD_WS,4)}, s5 offen")
        if half == 0:
            a("s_branch K3_DONE")
    a.label("K3_DONE")
    prof_end(a, opts, SRD_WS, 2, 15, 12)
    a.label("K3_END")
    a("s_endpgm")
    return name, kernel_desc(name, 256 + 32*NS, 102, 256)

def gen_k3b(a, opts):
    name = "k4_red_kernel"
    a.raw(kernel_header(name))
    a(f"""
    s_cmp_ge_u32 s2, {GRID_B}
    s_cbranch_scc1 K4_END
    s_load_dwordx2 s[4:5], s[0:1], 88
    s_load_dwordx2 s[6:7], s[0:1], 104
    v_lshrrev_b32 v2, 6, v0
    v_and_b32 v1, 63, v0
    s_nop 0
    v_readfirstlane_b32 s3, v2
    s_waitcnt lgkmcnt(0)
    s_mov_b32 s8, s4
    s_mov_b32 s9, s5
    s_mov_b32 s10, {2048*896}
    s_mov_b32 s11, 0x20000
    s_mov_b32 s12, s6
    s_mov_b32 s13, s7
    s_mov_b32 s14, {WS_SIZE}
    s_mov_b32 s15, 0x20000
    s_mul_hi_u32 s16, s2, {(1 << 32) // 7 + 1}
    s_mul_i32 s17, s16, 7
    s_sub_u32 s17, s2, s17
    s_mul_i32 s18, s16, {4*PT}
    s_mul_i32 s19, s3, {14*1024}
    s_add_u32 s18, s18, s19
    s_lshl_b32 s19, s17, 10
    s_add_u32 s18, s18, s19
    s_add_u32 s18, s18, {WS_P3}
    v_lshlrev_b32 v3, 4, v1
    """)
    for sp in range(4):
        a(f"s_add_u32 s19, s18, {sp*PT}")
        a(f"buffer_load_dwordx4 {vr(8+8*sp,4)}, v3, s[12:15], s19 offen")
        a(f"s_add_u32 s19, s19, {7*1024}")
        a(f"buffer_load_dwordx4 {vr(12+8*sp,4)}, v3, s[12:15], s19 offen")
    a(f"""
    s_lshr_b32 s20, s16, 2
    s_and_b32 s21, s16, 3
    s_lshl_b32 s20, s20, 7
    s_lshl_b32 s22, s3, 5
    s_add_u32 s20, s20, s22
    v_and_b32 v4, 15, v1
    v_bfe_u32 v5, v1, 4, 1
    v_lshl_add_u32 v4, v5, 4, v4
    v_add_u32 v4, s20, v4
    v_mul_u32_u24 v4, 896, v4
    v_lshrrev_b32 v5, 5, v1
    v_lshl_add_u32 v4, v5, 4, v4
    s_mul_i32 s21, s21, 224
    s_lshl_b32 s22, s17, 5
    s_add_u32 s21, s21, s22
    v_add_u32 v4, s21, v4
    s_waitcnt vmcnt(0)
    """)
    for r in range(8):
        a(f"v_add_f32 v{8+r}, v{8+r}, v{16+r}")
        a(f"v_add_f32 v{24+r}, v{24+r}, v{32+r}")
    for r in range(8):
        a(f"v_add_f32 v{8+r}, v{8+r}, v{24+r}")
    a("""
    v_cvt_pk_bf16_f32 v40, v8, v9
    v_cvt_pk_bf16_f32 v41, v10, v11
    v_cvt_pk_bf16_f32 v42, v12, v13
    v_cvt_pk_bf16_f32 v43, v14, v15
    s_nop 1
    v_permlane16_swap_b32 v40, v42
    v_permlane16_swap_b32 v41, v43
    buffer_store_dwordx4 v[40:43], v4, s[8:11], 0 offen
    """)
    a.label("K4_END")
    a("s_endpgm")
    return name, kernel_desc(name, 48, 32, 48)


def gen_k4f(a, opts):
    name = "k4_red_kernel"
    a.raw(kernel_header(name))
    a(f"""
    s_cmp_ge_u32 s2, {GRID_B}
    s_cbranch_scc1 K4_END
    s_load_dwordx2 s[4:5], s[0:1], 88
    s_load_dwordx2 s[6:7], s[0:1], 104
    v_lshrrev_b32 v2, 6, v0
    v_and_b32 v1, 63, v0
    s_nop 0
    v_readfirstlane_b32 s3, v2
    v_lshlrev_b32 v3, 4, v1
    s_lshl_b32 s16, s2, 2
    s_add_u32 s16, s16, s3
    s_lshl_b32 s18, s16, 14
    s_add_u32 s18, s18, {WS_P3}
    s_mov_b32 s14, {WS_SIZE}
    s_mov_b32 s15, 0x20000
    s_waitcnt lgkmcnt(0)
    s_mov_b32 s12, s6
    s_mov_b32 s13, s7
    """)
    for h in range(16):
        if h and h % 4 == 0:
            a("s_add_u32 s18, s18, 4096")
        a(f"buffer_load_dwordx4 {vr(16+4*h,4)}, v3, s[12:15], s18 offen offset:{(h%4)*1024}")
    a(f"""
    s_mov_b32 s8, s4
    s_mov_b32 s9, s5
    s_mov_b32 s10, {2048*896}
    s_mov_b32 s11, 0x20000
    s_mul_hi_u32 s17, s16, {(1 << 32) // 28 + 1}
    s_mul_i32 s19, s17, 28
    s_sub_u32 s19, s16, s19
    s_lshl_b32 s20, s17, 5
    v_and_b32 v4, 15, v1
    v_bfe_u32 v5, v1, 4, 1
    v_lshl_add_u32 v4, v5, 4, v4
    v_add_u32 v4, s20, v4
    v_mul_u32_u24 v4, 896, v4
    v_lshrrev_b32 v5, 5, v1
    v_lshl_add_u32 v4, v5, 4, v4
    s_lshl_b32 s22, s19, 5
    v_add_u32 v4, s22, v4
    """)
    for r in range(8): a(f"v_mov_b32 v{8+r}, 0")
    for h in range(16):
        a(f"s_waitcnt vmcnt({15-h})")
        for r in range(4):
            x = 16 + 4*h + r
            a(f"v_lshlrev_b32 v6, 16, v{x}")
            a(f"v_and_b32 v7, 0xffff0000, v{x}")
            a(f"v_add_f32 v{8+2*r}, v{8+2*r}, v6")
            a(f"v_add_f32 v{8+2*r+1}, v{8+2*r+1}, v7")
    if opts.get('perturb'):
        a(f"""
        s_cmp_eq_u32 s16, 0
        s_cbranch_scc0 K4_NOP
        v_cmp_eq_u32 vcc, 0, v1
        v_mov_b32 v6, 0
        v_mov_b32 v7, 0x{struct.unpack('<I', struct.pack('<f', opts['perturb']))[0]:08x}
        v_cndmask_b32 v6, v6, v7, vcc
        v_add_f32 v8, v8, v6
        """)
        a.label("K4_NOP")
    a("""
    v_cvt_pk_bf16_f32 v80, v8, v9
    v_cvt_pk_bf16_f32 v81, v10, v11
    v_cvt_pk_bf16_f32 v82, v12, v13
    v_cvt_pk_bf16_f32 v83, v14, v15
    s_nop 1
    v_permlane16_swap_b32 v80, v82
    v_permlane16_swap_b32 v81, v83
    buffer_store_dwordx4 v[80:83], v4, s[8:11], 0 offen
    """)
    a.label("K4_END")
    a("s_endpgm")
    return name, kernel_desc(name, 88, 32, 88)
```
